```python
import torch

def _softmax(x, axis=-1):
    return torch.softmax(x, dim=axis)
def _gelu(x):
    return torch.nn.functional.gelu(x, approximate="tanh")
def _silu(x):
    return torch.nn.functional.silu(x)
def _sigmoid(x):
    return torch.sigmoid(x)
def _layernorm(x, axis=-1, eps=1e-5):
    m = x.mean(dim=axis, keepdim=True)
    v = x.var(dim=axis, keepdim=True, unbiased=False)
    return (x - m) / torch.sqrt(v + eps)
def _scatter_add(tgt, idx, src, axis=0):
    return tgt.clone().index_add_(axis, idx, src)
def _segment_sum(src, seg, n):
    out = torch.zeros((n,) + src.shape[1:], dtype=src.dtype)
    return out.index_add_(0, seg, src)
def _pad(x, pw):
    flat = tuple(v for pair in reversed(pw) for v in pair)
    return torch.nn.functional.pad(x, flat)

kernel_name = 'recurrent_scan__linear_attn_block__glu_gated_glu__prompt'

def setup_inputs():

    _w = (lambda a: (lambda t: t.to(torch.bfloat16) if t.is_floating_point() else t)(torch.as_tensor(a)))
    def _A_setup():
        B, S, D = 1, 2048, 640
        return {
            "x": _w((lambda *s: torch.randn(*s, dtype=torch.bfloat16) * 0.05)(B, S, D)),
            "wqkv": _w((lambda *s: torch.randn(*s, dtype=torch.bfloat16) * 0.05)(D, 3 * D)),
            "wo": _w((lambda *s: torch.randn(*s, dtype=torch.bfloat16) * 0.05)(D, D)),
        }
    _A_in = _A_setup()

    def _B_setup():
        B, S, D, F = 1, 2048, 640, 1728
        return {
            "x": _w((lambda *s: torch.randn(*s, dtype=torch.bfloat16) * 0.05)(B, S, D)),
            "w_gate": _w((lambda *s: torch.randn(*s, dtype=torch.bfloat16) * 0.05)(D, F)),
            "w_up": _w((lambda *s: torch.randn(*s, dtype=torch.bfloat16) * 0.05)(D, F)),
            "w_down": _w((lambda *s: torch.randn(*s, dtype=torch.bfloat16) * 0.05)(F, D)),
        }
    _B_in = _B_setup()

    return {
        "A_x": _A_in["x"],
        "A_wqkv": _A_in["wqkv"],
        "A_wo": _A_in["wo"],
        "B_x": _B_in["x"],
        "B_w_gate": _B_in["w_gate"],
        "B_w_up": _B_in["w_up"],
        "B_w_down": _B_in["w_down"],
    }

def reference(A_x, A_wqkv, A_wo, B_x, B_w_gate, B_w_up, B_w_down):
    def _A_ref(x, wqkv, wo):
        B, S, D = x.shape
        H = 32; Dh = D // H
        qkv = (lambda x, *d: x.permute(*d))((x @ wqkv).reshape(B, S, 3, H, Dh), 2, 0, 3, 1, 4)
        q, k, v = qkv[0], qkv[1], qkv[2]
        phi = lambda t: torch.where(t > 0, t + 1, torch.exp(t)) + 1e-6
        pq, pk = phi(q), phi(k)
        kv = torch.einsum("bhsd,bhse->bhde", pk, v)
        z = torch.einsum("bhsd->bhd", pk)
        num = torch.einsum("bhqd,bhde->bhqe", pq, kv)
        den = torch.einsum("bhqd,bhd->bhq", pq, z)[..., None] + 1e-6
        o = num / den
        return (lambda x, *d: x.permute(*d))(o, 0, 2, 1, 3).reshape(B, S, D) @ wo

    def _B_ref(x, w_gate, w_up, w_down):
        g = torch.einsum("bsd,df->bsf", x, w_gate)
        u = torch.einsum("bsd,df->bsf", x, w_up)
        h = _sigmoid(g) * u
        return torch.einsum("bsf,fd->bsd", h, w_down)

    x = A_x
    xn = _layernorm(x, axis=-1)
    s = _A_ref(xn, A_wqkv, A_wo)
    g = _silu(_B_ref(xn, B_w_gate, B_w_up, B_w_down))
    return x + s * g
```

```python
import re

_REG = re.compile(r'^(v|a|s)(\d+)$')
_RNG = re.compile(r'^(v|a|s)\[(\d+):(\d+)\]$')

TRANS = ('v_exp_f32', 'v_rcp_f32', 'v_rsq_f32', 'v_log_f32', 'v_sqrt_f32', 'v_sin_f32', 'v_cos_f32')


def regs_of(tok):
    tok = tok.strip()
    neg = tok.startswith('-')
    if neg:
        tok = tok[1:]
    if tok.startswith('abs(') and tok.endswith(')'):
        tok = tok[4:-1]
    if tok.startswith('|') and tok.endswith('|'):
        tok = tok[1:-1]
    m = _REG.match(tok)
    if m:
        return {(m.group(1), int(m.group(2)))}
    m = _RNG.match(tok)
    if m:
        return {(m.group(1), i) for i in range(int(m.group(2)), int(m.group(3)) + 1)}
    if tok in ('vcc', 'vcc_lo', 'vcc_hi'):
        return {('vcc', 0)}
    if tok in ('exec', 'exec_lo', 'exec_hi'):
        return {('exec', 0)}
    if tok == 'm0':
        return {('m0', 0)}
    return set()


def split_ops(s):
    out, depth, cur = [], 0, ''
    for ch in s:
        if ch == '[' or ch == '(':
            depth += 1
        if ch == ']' or ch == ')':
            depth -= 1
        if ch == ',' and depth == 0:
            out.append(cur.strip())
            cur = ''
        else:
            cur += ch
    if cur.strip():
        out.append(cur.strip())
    return out


class Ins:
    __slots__ = ('kind', 'w', 'r', 'pos', 'passes', 'cread', 'wide_store', 'text', 'ab')


class Asm:
    def __init__(self):
        self.lines = []
        self.hist = []
        self.pos = 0
        self.nops = 0

    def raw(self, s):
        self.lines.append(s)

    def label(self, name):
        self.lines.append(name + ':')

    def comment(self, s):
        self.lines.append('    ; ' + s)

    def flush(self, n=16):
        self(f's_nop {n - 1}')

    def analyze(self, text):
        ins = Ins()
        ins.text = text
        parts = text.split(None, 1)
        mn = parts[0]
        rest = parts[1] if len(parts) > 1 else ''
        ops = split_ops(rest)
        toks = []
        mods = []
        for i, o in enumerate(ops):
            fields = o.split()
            toks.append(fields[0])
            mods += fields[1:]
        ins.passes = 0
        ins.cread = set()
        ins.ab = set()
        ins.wide_store = False
        w, r = set(), set()
        if mn.startswith('v_mfma'):
            ins.kind = 'mfma'
            w |= regs_of(toks[0])
            ins.ab = regs_of(toks[1]) | regs_of(toks[2])
            ins.cread = regs_of(toks[3])
            r |= ins.ab | ins.cread
            ins.passes = 8 if '32x32' in mn else 4
        elif mn.startswith('v_cmp'):
            ins.kind = 'valu'
            w |= regs_of(toks[0])
            if mn.startswith('v_cmpx'):
                w |= {('exec', 0)}
            for t in toks[1:]:
                r |= regs_of(t)
        elif mn.startswith('v_permlane'):
            ins.kind = 'perm'
            w |= regs_of(toks[0]) | regs_of(toks[1])
            r |= regs_of(toks[0]) | regs_of(toks[1])
        elif mn.startswith('v_readfirstlane') or mn.startswith('v_readlane'):
            ins.kind = 'rdlane'
            w |= regs_of(toks[0])
            for t in toks[1:]:
                r |= regs_of(t)
        elif mn.startswith('v_nop'):
            ins.kind = 'nop'
        elif mn.startswith('v_'):
            ins.kind = 'trans' if any(mn.startswith(t) for t in TRANS) else 'valu'
            w |= regs_of(toks[0])
            for t in toks[1:]:
                r |= regs_of(t)
            if mn.startswith('v_fmac') or mn.startswith('v_dot2c') or mn.startswith('v_pk_fmac'):
                r |= regs_of(toks[0])
            if mn.startswith('v_add_co') or mn.startswith('v_addc_co') or mn.startswith('v_sub_co'):
                w |= regs_of(toks[1])
        elif mn.startswith('ds_read') or mn.startswith('ds_bpermute') or mn.startswith('ds_swizzle'):
            ins.kind = 'ds'
            w |= regs_of(toks[0])
            for t in toks[1:]:
                r |= regs_of(t)
        elif mn.startswith('ds_'):
            ins.kind = 'ds'
            for t in toks:
                r |= regs_of(t)
        elif mn.startswith('buffer_load') or mn.startswith('global_load'):
            ins.kind = 'vmem'
            if 'lds' in mods:
                for t in toks:
                    r |= regs_of(t)
                r |= {('m0', 0)}
                ins.kind = 'dma'
            else:
                w |= regs_of(toks[0])
                for t in toks[1:]:
                    r |= regs_of(t)
        elif mn.startswith('buffer_store') or mn.startswith('global_store') or mn.startswith('buffer_atomic'):
            ins.kind = 'vmem'
            for t in toks:
                r |= regs_of(t)
            if 'x3' in mn or 'x4' in mn:
                ins.wide_store = True
                ins.ab = regs_of(toks[0])
        elif mn == 'buffer_inv':
            ins.kind = 'vmem'
        elif mn.startswith('s_'):
            ins.kind = 'salu'
            if mn.startswith('s_cmp') or mn in ('s_waitcnt', 's_barrier', 's_nop', 's_endpgm', 's_branch',
                                                 's_setprio', 's_sleep') or mn.startswith('s_cbranch'):
                for t in toks:
                    r |= regs_of(t)
            else:
                w |= regs_of(toks[0])
                for t in toks[1:]:
                    r |= regs_of(t)
                if 'saveexec' in mn:
                    w |= {('exec', 0)}
        else:
            raise ValueError('unknown instr ' + text)
        ins.w, ins.r = w, r
        return ins, mn, toks

    def need(self, p, c):
        n = 0
        vg = lambda s: {x for x in s if x[0] in ('v', 'a')}
        sg = lambda s: {x for x in s if x[0] in ('s', 'vcc')}
        if p.kind in ('valu', 'trans', 'perm'):
            if c.kind == 'mfma' and vg(p.w) & c.r:
                n = max(n, 2)
            if c.kind == 'perm' and vg(p.w) & c.r:
                n = max(n, 2)
            if c.kind == 'rdlane' and vg(p.w) & c.r:
                n = max(n, 1)
            if p.kind == 'trans' and c.kind in ('valu', 'perm', 'mfma', 'rdlane') and vg(p.w) & c.r:
                n = max(n, 1 if c.kind != 'mfma' else 2)
            if ('exec', 0) in p.w and c.kind == 'mfma':
                n = max(n, 4)
        if p.kind in ('valu', 'rdlane'):
            if sg(p.w) & c.r:
                if c.kind in ('valu', 'trans', 'perm'):
                    n = max(n, 2)
                if c.kind == 'rdlane':
                    n = max(n, 4)
                if c.kind in ('vmem', 'dma'):
                    n = max(n, 5)
                if c.kind == 'salu':
                    n = max(n, 1)
        if p.kind == 'mfma':
            big = 12 if p.passes == 8 else 8
            if c.kind == 'mfma':
                if p.w & c.ab:
                    n = max(n, big)
                if p.w & c.cread:
                    if not (c.cread == p.w and c.passes == p.passes):
                        n = max(n, big)
                if (p.w & c.w) and not (c.w == p.w):
                    n = max(n, big)
            else:
                if p.w & (c.r | c.w):
                    n = max(n, big)
                if c.kind in ('valu', 'trans', 'perm') and (p.cread & c.w):
                    n = max(n, 7 if p.passes == 8 else 3)
        if p.wide_store and c.kind in ('valu', 'trans', 'perm', 'mfma') and (p.ab & c.w):
            n = max(n, 2)
        if p.kind == 'salu' and ('m0', 0) in p.w and c.kind == 'dma':
            n = max(n, 1)
        if p.kind == 'salu' and ('exec', 0) in p.w and c.kind in ('valu', 'trans', 'perm', 'ds', 'vmem', 'mfma'):
            pass
        return n

    def __call__(self, text):
        text = text.strip()
        ins, mn, toks = self.analyze(text)
        if mn == 's_nop':
            self.lines.append('    ' + text)
            self.pos += int(toks[0], 0) + 1
            return
        req = 0
        for p in self.hist:
            d = self.pos - p.pos - 1
            if d >= 16:
                continue
            nd = self.need(p, ins)
            if nd > d:
                req = max(req, nd - d)
        if req:
            self.lines.append(f'    s_nop {req - 1}')
            self.pos += req
            self.nops += req
        ins.pos = self.pos
        self.pos += 1
        self.lines.append('    ' + text)
        self.hist.append(ins)
        if len(self.hist) > 40:
            self.hist = self.hist[-40:]

    def text(self):
        return '\n'.join(self.lines) + '\n'
```

```python
from asmlib import Asm
from layout import *

LOG2E = 0x3fb8aa3b
NLOG2E = 0xbfb8aa3b
EPS6 = 0x358637bd
EPS5 = 0x3727c5ac
CHUNK = 40960
KVL = 3 * CHUNK
ZL = KVL + 12800
K1_LDS = ZL + 640

V_TID, V_LANE, V_L31, V_HF = 0, 1, 2, 3
V_DMA = 4
V_LRD = 5
V_RD = 6
V_OUT = 7
V_T0 = 8
FR = 48
ACC_E, ACC_O = 64, 80
TMP = 96
PKC, PVC, PKP, PVP = 128, 136, 144, 152
D2A, D2B = 160, 176
VKV = 192
RAW = 64


def dma_issue(A, srd, scol):
    A(f's_mov_b32 s42, {scol}')
    for t in range(10):
        A(f's_add_u32 m0, s40, {t * 4096}')
        A(f'buffer_load_dwordx4 v{V_DMA}, {srd}, s42 offen lds')
        if t != 9:
            A('s_add_u32 s42, s42, s38')


def advance_bufs(A):
    A(f's_add_u32 s39, s39, {CHUNK}')
    A(f's_cmp_ge_u32 s39, {3 * CHUNK}')
    A(f's_cselect_b32 s39, 0, s39')
    A(f's_add_u32 s45, s45, {CHUNK}')
    A(f's_cmp_ge_u32 s45, {3 * CHUNK}')
    A(f's_cselect_b32 s45, 0, s45')
    A(f's_add_u32 s40, s45, s46')


def mfma_chunk(A, acc, transposed, PF=3):
    A(f'v_add_u32 v{V_RD}, s39, v{V_LRD}')

    def rd(s):
        f = FR + 4 * (s % 4)
        A(f'ds_read_b64_tr_b16 v[{f}:{f + 1}], v{V_RD} offset:{s * 1024}')
        A(f'ds_read_b64_tr_b16 v[{f + 2}:{f + 3}], v{V_RD} offset:{s * 1024 + 256}')
    for s in range(PF):
        rd(s)
    for s in range(40):
        if s + PF < 40:
            rd(s + PF)
        A(f's_waitcnt lgkmcnt({2 * min(PF, 39 - s)})')
        f = FR + 4 * (s % 4)
        c = '0' if s == 0 else f'v[{acc}:{acc + 15}]'
        if transposed:
            A(f'v_mfma_f32_32x32x16_bf16 v[{acc}:{acc + 15}], v[{f}:{f + 3}], a[{4 * s}:{4 * s + 3}], {c}')
        else:
            A(f'v_mfma_f32_32x32x16_bf16 v[{acc}:{acc + 15}], a[{4 * s}:{4 * s + 3}], v[{f}:{f + 3}], {c}')


def phi(A, dst, src, t1):
    A(f'v_mul_f32 v{t1}, s43, v{src}')
    A(f'v_min_f32 v{t1}, 0, v{t1}')
    A(f'v_exp_f32 v{t1}, v{t1}')
    A(f'v_max_f32 v{dst}, 0, v{src}')
    A(f'v_add_f32 v{dst}, v{dst}, v{t1}')
    A(f'v_add_f32 v{dst}, s44, v{dst}')


def store_rows(A, vals, soff, inst_off):
    P = TMP + 16
    for j in range(8):
        A(f'v_cvt_pk_bf16_f32 v{P + j}, v{vals + 2 * j}, v{vals + 2 * j + 1}')
    for pr in range(2):
        a, b = P + 4 * pr, P + 4 * pr + 2
        A(f'v_permlane32_swap_b32 v{a}, v{b}')
        A(f'v_permlane32_swap_b32 v{a + 1}, v{b + 1}')
    for pr in range(2):
        A(f'buffer_store_dwordx4 v[{P + 4 * pr}:{P + 4 * pr + 3}], v{V_OUT}, s[28:31], {soff} offen offset:{inst_off + 32 * pr}')


def chunk_head(A, nwait, srd, scol_expr, prefetch):
    A(f's_waitcnt vmcnt({nwait})')
    A('s_barrier')
    if prefetch:
        dma_issue(A, srd, scol_expr)


def gen_k1(A, name):
    A.raw(f'.globl {name}')
    A.raw('.p2align 8')
    A.raw(f'.type {name},@function')
    A.label(name)
    A('s_cmp_ge_u32 s2, 256')
    A(f's_cbranch_scc1 {name}_end')
    A('s_load_dwordx4 s[4:7], s[0:1], 0')
    A('s_load_dwordx4 s[8:11], s[0:1], 32')
    A('s_load_dwordx2 s[12:13], s[0:1], 72')
    A('s_and_b32 s42, s2, 7')
    A('s_lshr_b32 s43, s2, 3')
    A('s_and_b32 s32, s43, 15')
    A('s_lshr_b32 s43, s43, 4')
    A('s_lshl_b32 s33, s42, 1')
    A('s_add_u32 s33, s33, s43')
    A(f'v_and_b32 v{V_LANE}, 63, v0')
    A(f'v_lshrrev_b32 v{V_T0}, 6, v0')
    A(f'v_and_b32 v{V_L31}, 31, v0')
    A(f'v_readfirstlane_b32 s34, v{V_T0}')
    A(f'v_lshrrev_b32 v{V_HF}, 5, v{V_LANE}')
    A('s_waitcnt lgkmcnt(0)')
    A('s_mov_b32 s16, s4'); A('s_and_b32 s17, s5, 0xffff'); A(f's_mov_b32 s18, {2048 * 1280}'); A('s_mov_b32 s19, 0x20000')
    A('s_mov_b32 s28, s12'); A('s_and_b32 s29, s13, 0xffff'); A(f's_mov_b32 s30, {WS_END}'); A('s_mov_b32 s31, 0x20000')
    A('s_and_b32 s7, s7, 0xffff'); A('s_and_b32 s9, s9, 0xffff'); A('s_and_b32 s11, s11, 0xffff')
    A('s_cmp_lt_u32 s33, 6')
    A('s_cselect_b32 s20, s6, s8'); A('s_cselect_b32 s21, s7, s9')
    A('s_cselect_b32 s24, s6, s10'); A('s_cselect_b32 s25, s7, s11')
    A(f's_mov_b32 s22, {640 * 3456}'); A(f's_cselect_b32 s22, {640 * 3840}, s22')
    A('s_mov_b32 s26, s22')
    A('s_mov_b32 s23, 0x20000'); A('s_mov_b32 s27, 0x20000')
    A('s_mov_b32 s47, 3456'); A('s_cselect_b32 s47, 3840, s47')
    A('s_lshl_b32 s38, s47, 6')
    A('s_mul_i32 s35, s33, 640'); A('s_mov_b32 s36, 64'); A('s_mov_b32 s37, 128'); A('s_mov_b32 s41, 5')
    A('s_cmp_lt_u32 s33, 2')
    A(f's_cbranch_scc1 {name}_cols_done')
    A('s_sub_u32 s42, s33, 2'); A('s_mul_i32 s35, s42, 320'); A('s_add_u32 s35, s35, 1280')
    A('s_mov_b32 s36, 1280'); A('s_mov_b32 s37, 64')
    A('s_cmp_lt_u32 s33, 6')
    A(f's_cbranch_scc1 {name}_cols_done')
    A('s_sub_u32 s42, s33, 6')
    A('s_mul_i32 s35, s42, 6'); A('s_mul_i32 s43, s42, 5'); A('s_add_u32 s43, s43, 4')
    A('s_cmp_lt_u32 s42, 4')
    A('s_cselect_b32 s35, s35, s43'); A('s_cselect_b32 s41, 6, 5')
    A('s_lshl_b32 s35, s35, 6')
    A('s_mov_b32 s36, 0'); A('s_mov_b32 s37, 64')
    A.label(f'{name}_cols_done')
    A('s_lshl_b32 s42, s32, 7'); A('s_lshl_b32 s43, s34, 5'); A('s_add_u32 s42, s42, s43')
    A(f'v_add_u32 v{V_T0}, s42, v{V_L31}')
    A('s_movk_i32 s43, 1280')
    A(f'v_mul_lo_u32 v{V_T0 + 1}, v{V_T0}, s43')
    A(f'v_lshl_add_u32 v{V_T0 + 1}, v{V_HF}, 4, v{V_T0 + 1}')
    for s in range(40):
        A(f'buffer_load_dwordx4 v[{RAW + 4 * s}:{RAW + 4 * s + 3}], v{V_T0 + 1}, s[16:19], 0 offen offset:{s * 32}')
    A('s_cmp_lt_u32 s33, 6')
    A('s_mov_b32 s43, 3456'); A('s_cselect_b32 s43, 1280, s43')
    A(f'v_mul_lo_u32 v{V_OUT}, v{V_T0}, s43')
    A(f'v_lshl_add_u32 v{V_OUT}, v{V_HF}, 4, v{V_OUT}')
    A(f'v_lshrrev_b32 v{V_T0 + 2}, 2, v{V_LANE}')
    A('s_lshl_b32 s43, s34, 4')
    A(f'v_add_u32 v{V_T0 + 2}, s43, v{V_T0 + 2}')
    A(f'v_mul_lo_u32 v{V_DMA}, v{V_T0 + 2}, s47')
    A(f'v_and_b32 v{V_T0 + 2}, 3, v{V_LANE}')
    A(f'v_lshl_add_u32 v{V_DMA}, v{V_T0 + 2}, 4, v{V_DMA}')
    A(f'v_lshlrev_b32 v{V_LRD}, 3, v{V_T0 + 2}')
    A(f'v_bfe_u32 v{V_T0 + 3}, v{V_LANE}, 2, 2')
    A(f'v_lshl_add_u32 v{V_LRD}, v{V_T0 + 3}, 6, v{V_LRD}')
    A(f'v_bfe_u32 v{V_T0 + 3}, v{V_LANE}, 4, 1')
    A(f'v_lshl_add_u32 v{V_LRD}, v{V_T0 + 3}, 5, v{V_LRD}')
    A(f'v_lshl_add_u32 v{V_LRD}, v{V_HF}, 9, v{V_LRD}')
    A('s_lshl_b32 s46, s34, 10')
    A('s_mov_b32 s45, 0')
    A('s_mov_b32 s40, s46')
    dma_issue(A, 's[20:23]', 's35')
    A(f's_mov_b32 s45, {CHUNK}')
    A('s_add_u32 s40, s45, s46')
    A('s_add_u32 s48, s35, s36')
    dma_issue(A, 's[24:27]', 's48')
    A(f's_mov_b32 s45, {2 * CHUNK}')
    A('s_add_u32 s40, s45, s46')
    A('s_mov_b32 s39, 0')
    A(f'v_mov_b32 v{V_T0 + 4}, 0')
    A(f'v_lshlrev_b32 v{V_T0 + 5}, 2, v0')
    A(f'v_add_u32 v{V_T0 + 5}, {KVL}, v{V_T0 + 5}')
    for j in range(14):
        if j == 13:
            A(f'v_cmp_gt_u32 vcc, {3360 - 13 * 256}, v0')
            A('s_and_saveexec_b64 s[50:51], vcc')
        A(f'ds_write_b32 v{V_T0 + 5}, v{V_T0 + 4} offset:{j * 1024}')
    A('s_mov_b64 exec, s[50:51]')
    A(f's_mov_b32 s43, {LOG2E}'); A(f's_mov_b32 s44, {EPS6}')
    A(f'v_mov_b32 v{V_T0 + 6}, 0x3f803f80')
    A('s_waitcnt vmcnt(20)')
    acc = [V_T0 + 8 + i for i in range(8)]
    for a in acc:
        A(f'v_mov_b32 v{a}, 0')
    for d in range(160):
        A(f'v_dot2_f32_bf16 v{acc[d % 4]}, v{RAW + d}, v{V_T0 + 6}, v{acc[d % 4]}')
        A(f'v_dot2_f32_bf16 v{acc[4 + d % 4]}, v{RAW + d}, v{RAW + d}, v{acc[4 + d % 4]}')
    A('s_nop 3')
    A(f'v_add_f32 v{acc[0]}, v{acc[0]}, v{acc[1]}'); A(f'v_add_f32 v{acc[2]}, v{acc[2]}, v{acc[3]}')
    A(f'v_add_f32 v{acc[4]}, v{acc[4]}, v{acc[5]}'); A(f'v_add_f32 v{acc[6]}, v{acc[6]}, v{acc[7]}')
    A(f'v_add_f32 v{acc[0]}, v{acc[0]}, v{acc[2]}'); A(f'v_add_f32 v{acc[4]}, v{acc[4]}, v{acc[6]}')
    A(f'v_mov_b32 v{acc[1]}, v{acc[0]}'); A(f'v_mov_b32 v{acc[5]}, v{acc[4]}')
    A(f'v_permlane32_swap_b32 v{acc[0]}, v{acc[1]}')
    A(f'v_permlane32_swap_b32 v{acc[4]}, v{acc[5]}')
    A(f'v_add_f32 v{acc[0]}, v{acc[0]}, v{acc[1]}')
    A(f'v_add_f32 v{acc[4]}, v{acc[4]}, v{acc[5]}')
    A(f's_mov_b32 s48, 0x3acccccd')
    A(f'v_mul_f32 v{acc[0]}, s48, v{acc[0]}')
    A(f'v_mul_f32 v{acc[4]}, s48, v{acc[4]}')
    A(f'v_fma_f32 v{acc[4]}, -v{acc[0]}, v{acc[0]}, v{acc[4]}')
    A(f'v_max_f32 v{acc[4]}, 0, v{acc[4]}')
    A(f'v_add_f32 v{acc[4]}, {EPS5}, v{acc[4]}')
    A(f'v_rsq_f32 v{acc[4]}, v{acc[4]}')
    A(f'v_mul_f32 v{acc[0]}, v{acc[0]}, v{acc[4]}')
    A(f'v_sub_f32 v{acc[0]}, 0, v{acc[0]}')
    RSTD, NMR = acc[4], acc[0]
    A(f's_mov_b32 s48, 0xffff0000')
    for d in range(160):
        t = V_T0 + 20 + 2 * (d % 4)
        A(f'v_lshlrev_b32 v{t}, 16, v{RAW + d}')
        A(f'v_and_b32 v{t + 1}, s48, v{RAW + d}')
        A(f'v_fma_f32 v{t}, v{t}, v{RSTD}, v{NMR}')
        A(f'v_fma_f32 v{t + 1}, v{t + 1}, v{RSTD}, v{NMR}')
        A(f'v_cvt_pk_bf16_f32 v{t}, v{t}, v{t + 1}')
        A(f'v_accvgpr_write_b32 a{d}, v{t}')
    A('s_cmp_lt_u32 s33, 2')
    A(f's_cbranch_scc1 {name}_q')
    A('s_cmp_lt_u32 s33, 6')
    A(f's_cbranch_scc1 {name}_kv')

    def gu_pair(prefetch):
        A('s_add_u32 s48, s35, s37')
        chunk_head(A, 10, 's[20:23]', 's48', prefetch)
        mfma_chunk(A, ACC_E, True)
        advance_bufs(A)
        chunk_head(A, 10 if prefetch else 0, 's[24:27]', 's48', prefetch)
        mfma_chunk(A, ACC_O, True)
        advance_bufs(A)
        A(f's_mov_b32 s49, {NLOG2E}')
        for i in range(16):
            t = TMP + (i % 8)
            A(f'v_mul_f32 v{t}, s49, v{ACC_E + i}')
            A(f'v_exp_f32 v{t}, v{t}')
            A(f'v_add_f32 v{t}, 1.0, v{t}')
            A(f'v_rcp_f32 v{t}, v{t}')
            A(f'v_mul_f32 v{ACC_O + i}, v{t}, v{ACC_O + i}')
        A(f's_add_u32 s49, s35, {OFF_H}')
        store_rows(A, ACC_O, 's49', 0)
        A('s_mov_b32 s35, s48')
    A('s_sub_u32 s41, s41, 1')
    A.flush()
    A.label(f'{name}_gu_loop')
    gu_pair(True)
    A('s_sub_u32 s41, s41, 1')
    A('s_cmp_lg_u32 s41, 0')
    A.flush()
    A(f's_cbranch_scc1 {name}_gu_loop')
    gu_pair(False)
    A('s_endpgm')

    A.label(f'{name}_q')

    def q_pair(prefetch):
        A('s_add_u32 s48, s35, s37')
        A('s_add_u32 s49, s48, s36')
        chunk_head(A, 10, 's[20:23]', 's48', prefetch)
        mfma_chunk(A, ACC_E, True)
        advance_bufs(A)
        chunk_head(A, 10 if prefetch else 0, 's[24:27]', 's49', prefetch)
        mfma_chunk(A, ACC_O, True)
        advance_bufs(A)
        A(f's_add_u32 s49, s35, {OFF_PQ}')
        for acc, off in ((ACC_E, 0), (ACC_O, 64)):
            for i in range(16):
                phi(A, acc + i, acc + i, TMP + (i % 8))
            store_rows(A, acc, 's49', off)
        A('s_mov_b32 s35, s48')
    A('s_sub_u32 s41, s41, 1')
    A.flush()
    A.label(f'{name}_q_loop')
    q_pair(True)
    A('s_sub_u32 s41, s41, 1')
    A('s_cmp_lg_u32 s41, 0')
    A.flush()
    A(f's_cbranch_scc1 {name}_q_loop')
    q_pair(False)
    A('s_endpgm')

    A.label(f'{name}_kv')
    A('s_movk_i32 s48, 3277')
    A('s_movk_i32 s49, 320')
    for cv in range(5):
        t = V_T0 + 8
        A(f'v_add_u32 v{t}, {32 * cv}, v{V_L31}')
        A(f'v_mul_lo_u32 v{t + 1}, v{t}, s48')
        A(f'v_lshrrev_b32 v{t + 1}, 16, v{t + 1}')
        A(f'v_mul_u32_u24 v{t + 1}, 20, v{t + 1}')
        A(f'v_sub_u32 v{t}, v{t}, v{t + 1}')
        A(f'v_lshlrev_b32 v{t}, 2, v{t}')
        A(f'v_mul_lo_u32 v{t + 1}, v{V_HF}, s49')
        A(f'v_add_u32 v{t}, v{t}, v{t + 1}')
        A(f'v_add_u32 v{VKV + cv}, {KVL}, v{t}')
    VZ = V_T0 + 12
    A(f'v_lshlrev_b32 v{VZ}, 2, v{V_L31}')
    A(f'v_add_u32 v{VZ}, {ZL}, v{VZ}')

    def kv_block(ck, cv, pk, pv, d2):
        items = []
        for i in range(16):
            masks = []
            for hf in range(2):
                nk = 32 * ck + 8 * (i >> 2) + 4 * hf + (i & 3)
                hk = nk // 20
                m = 0
                for l in range(32):
                    if (32 * cv + l) // 20 == hk:
                        m |= 1 << l
                masks.append(m)
            if masks[0] or masks[1]:
                items.append((i, masks))
        if not items:
            return
        A(f'v_mfma_f32_32x32x16_bf16 v[{d2}:{d2 + 15}], v[{pk}:{pk + 3}], v[{pv}:{pv + 3}], 0')
        A(f'v_mfma_f32_32x32x16_bf16 v[{d2}:{d2 + 15}], v[{pk + 4}:{pk + 7}], v[{pv + 4}:{pv + 7}], v[{d2}:{d2 + 15}]')
        A('s_nop 15')
        for i, masks in items:
            A(f's_mov_b32 exec_lo, 0x{masks[0]:x}')
            A(f's_mov_b32 exec_hi, 0x{masks[1]:x}')
            off = (32 * ck + 8 * (i >> 2) + (i & 3)) * 80
            A(f'ds_add_f32 v{VKV + cv}, v{d2 + i} offset:{off}')
        A('s_mov_b64 exec, -1')

    for c in range(5):
        prefetch = c < 4
        A('s_add_u32 s48, s35, s37')
        A('s_add_u32 s49, s48, s36')
        chunk_head(A, 10, 's[20:23]', 's48', prefetch)
        mfma_chunk(A, ACC_E, False)
        advance_bufs(A)
        chunk_head(A, 10 if prefetch else 0, 's[24:27]', 's49', prefetch)
        mfma_chunk(A, ACC_O, False)
        advance_bufs(A)
        A('s_mov_b32 s35, s48')
        pkc, pvc = (PKC, PVC) if c % 2 == 0 else (PKP, PVP)
        pkp, pvp = (PKP, PVP) if c % 2 == 0 else (PKC, PVC)
        for i in range(16):
            phi(A, ACC_E + i, ACC_E + i, TMP + (i % 8))
        zs = TMP + 8
        A(f'v_add_f32 v{zs}, v{ACC_E}, v{ACC_E + 1}')
        for i in range(2, 16):
            A(f'v_add_f32 v{zs}, v{zs}, v{ACC_E + i}')
        A(f'ds_add_f32 v{VZ}, v{zs} offset:{128 * c}')
        for j in range(8):
            A(f'v_cvt_pk_bf16_f32 v{pkc + j}, v{ACC_E + 2 * j}, v{ACC_E + 2 * j + 1}')
            A(f'v_cvt_pk_bf16_f32 v{pvc + j}, v{ACC_O + 2 * j}, v{ACC_O + 2 * j + 1}')
        kv_block(c, c, pkc, pvc, D2A)
        if c > 0:
            kv_block(c - 1, c, pkp, pvc, D2B)
            kv_block(c, c - 1, pkc, pvp, D2A)
    A('s_waitcnt lgkmcnt(0)')
    A('s_barrier')
    A('s_sub_u32 s48, s33, 2')
    A('s_lshl_b32 s49, s32, 5'); A('s_lshl_b32 s42, s48, 3'); A('s_add_u32 s49, s49, s42')
    A('s_mul_i32 s49, s49, 1600'); A(f's_add_u32 s49, s49, {OFF_KVP}')
    A(f'v_lshlrev_b32 v{V_T0}, 2, v0')
    A(f'v_add_u32 v{V_T0 + 1}, {KVL}, v{V_T0}')
    for j in range(13):
        A(f'ds_read_b32 v{TMP + j}, v{V_T0 + 1} offset:{1024 * j}')
    A(f'ds_read_b32 v{TMP + 13}, v{V_T0 + 1} offset:{ZL - KVL}')
    A('s_waitcnt lgkmcnt(0)')
    for j in range(13):
        if j == 12:
            A(f'v_cmp_gt_u32 vcc, {3200 - 12 * 256}, v0')
            A('s_and_saveexec_b64 s[50:51], vcc')
        A(f's_add_u32 s42, s49, {1024 * j}')
        A(f'buffer_store_dword v{TMP + j}, v{V_T0}, s[28:31], s42 offen')
    A('s_mov_b64 exec, s[50:51]')
    A('s_mul_i32 s49, s32, 2560'); A('s_mul_i32 s42, s48, 640'); A('s_add_u32 s49, s49, s42')
    A(f's_add_u32 s49, s49, {OFF_ZP}')
    A(f'v_cmp_gt_u32 vcc, 160, v0')
    A('s_and_saveexec_b64 s[50:51], vcc')
    A(f'buffer_store_dword v{TMP + 13}, v{V_T0}, s[28:31], s49 offen')
    A('s_mov_b64 exec, s[50:51]')
    A.label(f'{name}_end')
    A('s_endpgm')
```

```python
from asmlib import Asm
from layout import *

K15_LDS = 2560
EPS6 = 0x358637bd


def gen_k15(A, name):
    A.raw(f'.globl {name}')
    A.raw('.p2align 8')
    A.raw(f'.type {name},@function')
    A.label(name)
    A('s_cmp_ge_u32 s2, 384')
    A(f's_cbranch_scc1 {name}_end')
    A('s_load_dwordx2 s[4:5], s[0:1], 16')
    A('s_load_dwordx2 s[6:7], s[0:1], 72')
    A('s_waitcnt lgkmcnt(0)')
    A('s_mov_b32 s8, s4'); A('s_and_b32 s9, s5, 0xffff'); A(f's_mov_b32 s10, {640 * 1280}'); A('s_mov_b32 s11, 0x20000')
    A('s_mov_b32 s12, s6'); A('s_and_b32 s13, s7, 0xffff'); A(f's_mov_b32 s14, {WS_END}'); A('s_mov_b32 s15, 0x20000')
    A('v_lshlrev_b32 v1, 2, v0')
    A('s_cmp_ge_u32 s2, 256')
    A(f's_cbranch_scc1 {name}_a')
    A('s_lshr_b32 s16, s2, 3')
    A('s_and_b32 s17, s2, 7')
    A('s_movk_i32 s18, 205')
    A('v_mul_lo_u32 v2, v0, s18')
    A('v_lshrrev_b32 v2, 13, v2')
    A('v_mul_u32_u24 v3, 40, v2')
    A('v_sub_u32 v3, v0, v3')
    A('v_lshlrev_b32 v4, 2, v3')
    A('s_mul_i32 s18, s16, 25600')
    A('s_mul_i32 s19, s17, 160')
    A('s_add_u32 s18, s18, s19')
    for e in range(20):
        A(f's_add_u32 s20, s18, {e * 1280}')
        A(f'buffer_load_dword v{40 + e}, v4, s[8:11], s20 offen')
    A('s_mul_i32 s20, s16, 1600')
    A(f's_add_u32 s20, s20, {OFF_KVP}')
    A('v_cmp_gt_u32 vcc, 144, v0')
    A('v_add_u32 v5, 1024, v1')
    A('v_cndmask_b32 v5, v1, v5, vcc')
    for rb in range(16):
        A(f's_add_u32 s21, s20, {rb * 32 * 1600}')
        A(f'buffer_load_dword v{64 + rb}, v1, s[12:15], s21 offen')
        A(f'buffer_load_dword v{80 + rb}, v5, s[12:15], s21 offen')
    A('s_waitcnt vmcnt(0)')
    for rb in range(1, 16):
        A(f'v_add_f32 v64, v64, v{64 + rb}')
        A(f'v_add_f32 v80, v80, v{80 + rb}')
    A('ds_write_b32 v1, v64')
    A('ds_write_b32 v5, v80')
    A('s_waitcnt lgkmcnt(0)')
    A('s_barrier')
    A('s_mov_b32 s21, 0xffff0000')
    for e in range(20):
        A(f'v_lshlrev_b32 v{100 + e}, 16, v{40 + e}')
        A(f'v_and_b32 v{120 + e}, s21, v{40 + e}')
    A('v_mul_u32_u24 v6, 320, v2')
    for dd in range(4):
        for q in range(5):
            A(f'ds_read_b128 v[{140 + 20 * dd + 4 * q}:{140 + 20 * dd + 4 * q + 3}], v6 offset:{dd * 80 + q * 16}')
    A('s_waitcnt lgkmcnt(0)')
    A('s_movk_i32 s21, 5120')
    A('v_mul_lo_u32 v7, v2, s21')
    A('v_add_u32 v7, v7, v4')
    A(f's_add_u32 s22, s18, {OFF_WP}')
    A('v_cmp_gt_u32 vcc, 200, v0')
    A('s_and_saveexec_b64 s[24:25], vcc')
    for dd in range(4):
        lo, hi = 8, 9
        A(f'v_mul_f32 v{lo}, v{140 + 20 * dd}, v100')
        A(f'v_mul_f32 v{hi}, v{140 + 20 * dd}, v120')
        for e in range(1, 20):
            A(f'v_fmac_f32 v{lo}, v{140 + 20 * dd + e}, v{100 + e}')
            A(f'v_fmac_f32 v{hi}, v{140 + 20 * dd + e}, v{120 + e}')
        A(f'v_cvt_pk_bf16_f32 v{10 + dd}, v{lo}, v{hi}')
        A(f'buffer_store_dword v{10 + dd}, v7, s[12:15], s22 offen offset:{dd * 1280}')
    A('s_endpgm')
    A.label(f'{name}_a')
    A('s_sub_u32 s16, s2, 256')
    A('v_lshrrev_b32 v2, 5, v0')
    A('v_and_b32 v3, 31, v0')
    A('s_movk_i32 s18, 1280')
    A('v_mul_lo_u32 v4, v2, s18')
    A('v_mul_u32_u24 v5, 40, v3')
    A('v_add_u32 v4, v4, v5')
    A('s_mul_i32 s17, s16, 20480')
    A(f's_add_u32 s18, s17, {OFF_PQ}')
    A(f's_add_u32 s19, s18, {8 * 1280}')
    for it, sb in ((0, 's18'), (1, 's19')):
        for q in range(5):
            r = 100 + 10 * it + 2 * q
            A(f'buffer_load_dwordx2 v[{r}:{r + 1}], v4, s[12:15], {sb} offen offset:{8 * q}')
    A('v_cmp_gt_u32 vcc, 128, v0')
    A('v_add_u32 v6, 1024, v1')
    A('v_add_u32 v7, 2048, v1')
    A('v_cndmask_b32 v7, v1, v7, vcc')
    for rb in range(16):
        A(f's_mov_b32 s21, {OFF_ZP + rb * 2560}')
        A(f'buffer_load_dword v{20 + rb}, v1, s[12:15], s21 offen')
        A(f'buffer_load_dword v{40 + rb}, v6, s[12:15], s21 offen')
        A(f'buffer_load_dword v{60 + rb}, v7, s[12:15], s21 offen')
    A('s_waitcnt vmcnt(0)')
    for rb in range(1, 16):
        A(f'v_add_f32 v20, v20, v{20 + rb}')
        A(f'v_add_f32 v40, v40, v{40 + rb}')
        A(f'v_add_f32 v60, v60, v{60 + rb}')
    A('ds_write_b32 v1, v20')
    A('ds_write_b32 v6, v40')
    A('ds_write_b32 v7, v60')
    A('s_waitcnt lgkmcnt(0)')
    A('s_barrier')
    A('v_mul_u32_u24 v8, 80, v3')
    for q in range(5):
        A(f'ds_read_b128 v[{120 + 4 * q}:{120 + 4 * q + 3}], v8 offset:{16 * q}')
    A('s_waitcnt lgkmcnt(0)')
    A('s_mov_b32 s21, 0xffff0000')
    A(f's_mov_b32 s22, {EPS6}')
    A(f's_add_u32 s18, s17, {OFF_AP}')
    A(f's_add_u32 s19, s18, {8 * 1280}')
    for it, sb in ((0, 's18'), (1, 's19')):
        base = 100 + 10 * it
        for j in range(10):
            A(f'v_lshlrev_b32 v{140 + 2 * j}, 16, v{base + j}')
            A(f'v_and_b32 v{141 + 2 * j}, s21, v{base + j}')
        A('v_mul_f32 v9, v140, v120')
        for j in range(1, 20):
            A(f'v_fmac_f32 v9, v{140 + j}, v{120 + j}')
        A('v_add_f32 v9, s22, v9')
        A('v_rcp_f32 v9, v9')
        for j in range(20):
            A(f'v_mul_f32 v{140 + j}, v9, v{140 + j}')
        for j in range(10):
            A(f'v_cvt_pk_bf16_f32 v{base + j}, v{140 + 2 * j}, v{141 + 2 * j}')
        for q in range(5):
            r = base + 2 * q
            A(f'buffer_store_dwordx2 v[{r}:{r + 1}], v4, s[12:15], {sb} offen offset:{8 * q}')
    A.label(f'{name}_end')
    A('s_endpgm')
```

```python
from asmlib import Asm
from layout import *

SLOT = 36864
HALF = 18432
BOFF = 8192
K2_LDS = 4 * SLOT
NLOG2E = 0xbfb8aa3b
NST = 19

V_LANE = 1
V_AE, V_AH = 2, 3
V_BD = 4
V_RA = 10
V_X = 18
V_T = 20
AF = 40
BF = 56
ACC1 = 96
ACC2 = 136
XR = 176
RED = 196


def gen_k2(A, name):
    A.raw(f'.globl {name}')
    A.raw('.p2align 8')
    A.raw(f'.type {name},@function')
    A.label(name)
    A('s_cmp_ge_u32 s2, 256')
    A(f's_cbranch_scc1 {name}_end')
    A('s_load_dwordx2 s[4:5], s[0:1], 0')
    A('s_load_dwordx4 s[8:11], s[0:1], 48')
    A('s_load_dwordx2 s[6:7], s[0:1], 72')
    A('s_and_b32 s32, s2, 7')
    A('s_lshr_b32 s33, s2, 3')
    A(f'v_and_b32 v{V_LANE}, 63, v0')
    A(f'v_lshrrev_b32 v{V_T}, 6, v0')
    A(f'v_readfirstlane_b32 s34, v{V_T}')
    A('s_waitcnt lgkmcnt(0)')
    A('s_and_b32 s35, s34, 1')
    A('s_lshr_b32 s36, s34, 1')
    A('s_mov_b32 s12, s4'); A('s_and_b32 s13, s5, 0xffff'); A(f's_mov_b32 s14, {2048 * 1280}'); A('s_mov_b32 s15, 0x20000')
    A('s_mov_b32 s16, s6'); A('s_and_b32 s17, s7, 0xffff'); A(f's_mov_b32 s18, {WS_END}'); A('s_mov_b32 s19, 0x20000')
    A('s_mov_b32 s20, s8'); A('s_and_b32 s21, s9, 0xffff'); A(f's_mov_b32 s22, {1728 * 1280}'); A('s_mov_b32 s23, 0x20000')
    A('s_mov_b32 s24, s10'); A('s_and_b32 s25, s11, 0xffff'); A(f's_mov_b32 s26, {2048 * 1280}'); A('s_mov_b32 s27, 0x20000')
    A('s_cmp_eq_u32 s36, 0')
    A('s_cselect_b32 s28, s16, s20'); A('s_cselect_b32 s29, s17, s21'); A('s_cselect_b32 s30, s18, s22')
    A('s_mov_b32 s31, 0x20000')
    A(f's_mov_b32 s37, {OFF_H + 1152}'); A(f's_cselect_b32 s37, {OFF_AP}, s37')
    A(f's_mov_b32 s38, {OFF_H + 1152}'); A(f's_cselect_b32 s38, {(OFF_H - 1280)}, s38')
    A(f's_mov_b32 s39, {576 * 1280}'); A(f's_cselect_b32 s39, {OFF_WP}, s39')
    A(f's_mov_b32 s40, {576 * 1280}'); A(f's_cselect_b32 s40, {(-819200) & 0xffffffff}, s40')
    A(f's_mov_b32 s41, {8 * 3456}'); A(f's_cselect_b32 s41, {8 * 1280}, s41')
    A('s_lshl_b32 s42, s33, 6'); A('s_lshl_b32 s43, s35, 5'); A('s_add_u32 s42, s42, s43')
    A(f'v_lshrrev_b32 v{V_T}, 3, v{V_LANE}')
    A(f'v_and_b32 v{V_T + 1}, 7, v{V_LANE}')
    A(f'v_xor_b32 v{V_T + 1}, v{V_T + 1}, v{V_T}')
    A(f'v_lshlrev_b32 v{V_T + 1}, 4, v{V_T + 1}')
    A(f'v_add_u32 v{V_T}, s42, v{V_T}')
    A('s_movk_i32 s43, 1280')
    A(f'v_mul_lo_u32 v{V_AE}, v{V_T}, s43')
    A('s_movk_i32 s43, 3456')
    A(f'v_mul_lo_u32 v{V_AH}, v{V_T}, s43')
    A(f'v_add_u32 v{V_AE}, v{V_AE}, v{V_T + 1}')
    A(f'v_add_u32 v{V_AH}, v{V_AH}, v{V_T + 1}')
    A('s_cmp_eq_u32 s36, 0')
    A('s_cselect_b64 vcc, -1, 0')
    A(f'v_cndmask_b32 v{V_AE}, v{V_AH}, v{V_AE}, vcc')
    A('s_mul_i32 s43, s35, 320')
    A('s_movk_i32 s44, 6554')
    A('s_mul_i32 s45, s32, 160')
    for ii in range(5):
        t = V_T
        A(f'v_add_u32 v{t}, s43, v{V_LANE}')
        A(f'v_add_u32 v{t}, {64 * ii}, v{t}')
        A(f'v_mul_lo_u32 v{t + 1}, v{t}, s44')
        A(f'v_lshrrev_b32 v{t + 1}, 16, v{t + 1}')
        A(f'v_mul_u32_u24 v{t + 2}, 10, v{t + 1}')
        A(f'v_sub_u32 v{t + 2}, v{t}, v{t + 2}')
        A(f'v_bfe_u32 v{t + 3}, v{t + 1}, 3, 1')
        A(f'v_lshlrev_b32 v{t + 3}, 1, v{t + 3}')
        A(f'v_sub_u32 v{t + 2}, v{t + 2}, v{t + 3}')
        A(f'v_add_u32 v{t + 3}, 10, v{t + 2}')
        A(f'v_cmp_gt_i32 vcc, 0, v{t + 2}')
        A(f'v_cndmask_b32 v{t + 2}, v{t + 2}, v{t + 3}, vcc')
        A(f'v_lshlrev_b32 v{t + 2}, 4, v{t + 2}')
        A(f'v_mul_u32_u24 v{t + 1}, 1280, v{t + 1}')
        A(f'v_add_u32 v{t + 1}, v{t + 1}, v{t + 2}')
        A(f'v_add_u32 v{V_BD + ii}, s45, v{t + 1}')
    A(f's_mul_i32 s43, s36, {HALF}')
    A(f'v_and_b32 v{V_T}, 15, v{V_LANE}')
    A('s_lshl_b32 s44, s35, 5')
    A(f'v_add_u32 v{V_T}, s44, v{V_T}')
    A(f'v_lshlrev_b32 v{V_T}, 7, v{V_T}')
    A(f'v_lshrrev_b32 v{V_T + 1}, 4, v{V_LANE}')
    A(f'v_and_b32 v{V_T + 2}, 7, v{V_LANE}')
    A(f'v_xor_b32 v{V_T + 2}, v{V_T + 2}, v{V_T + 1}')
    A(f'v_lshl_add_u32 v{V_T}, v{V_T + 2}, 4, v{V_T}')
    A(f'v_add_u32 v{V_RA}, s43, v{V_T}')
    A(f'v_xor_b32 v{V_RA + 1}, 64, v{V_RA}')
    A(f'v_bfe_u32 v{V_T + 2}, v{V_LANE}, 2, 2')
    A(f'v_lshl_add_u32 v{V_T + 2}, v{V_T + 1}, 3, v{V_T + 2}')
    A(f'v_mul_u32_u24 v{V_T + 2}, 160, v{V_T + 2}')
    A(f'v_bfe_u32 v{V_T + 3}, v{V_LANE}, 1, 1')
    A(f'v_bfe_u32 v{V_T + 4}, v{V_LANE}, 4, 1')
    A(f'v_lshl_add_u32 v{V_T + 3}, v{V_T + 4}, 1, v{V_T + 3}')
    A(f'v_lshl_add_u32 v{V_T + 2}, v{V_T + 3}, 4, v{V_T + 2}')
    A(f'v_and_b32 v{V_T + 3}, 1, v{V_LANE}')
    A(f'v_lshl_add_u32 v{V_T + 2}, v{V_T + 3}, 3, v{V_T + 2}')
    A(f's_add_u32 s44, s43, {BOFF}')
    A(f'v_add_u32 v{V_RA + 2}, s44, v{V_T + 2}')
    A(f'v_mul_u32_u24 v{V_T + 3}, 160, v{V_T + 4}')
    A(f'v_add_u32 v{V_RA + 3}, 128, v{V_RA + 2}')
    A(f'v_sub_u32 v{V_RA + 3}, v{V_RA + 3}, v{V_T + 3}')
    for j in range(4):
        A(f'v_add_u32 v{V_RA + 4 + j}, {2 * SLOT}, v{V_RA + j}')
    A(f'v_and_b32 v{V_T}, 15, v{V_LANE}')
    A(f'v_add_u32 v{V_T}, s42, v{V_T}')
    A('s_movk_i32 s44, 1280')
    A(f'v_mul_lo_u32 v{V_X}, v{V_T}, s44')
    A(f'v_lshl_add_u32 v{V_X}, v{V_T + 1}, 3, v{V_X}')
    A(f'v_add_u32 v{V_X}, s45, v{V_X}')
    A('s_lshl_b32 s46, s35, 12'); A('s_add_u32 s46, s46, s43')
    A('s_mul_i32 s47, s35, 5120'); A('s_add_u32 s47, s47, s43'); A(f's_add_u32 s47, s47, {BOFF}')

    def issue(t):
        slot = (t % 4) * SLOT
        early = t < 10
        va = V_AE if early else V_AH
        A(f's_add_u32 s48, {"s37" if early else "s38"}, {128 * t}')
        for ii in range(4):
            A(f's_add_u32 m0, s46, {slot + ii * 1024}')
            A(f'buffer_load_dwordx4 v{va}, s[16:19], s48 offen lds')
            if ii < 3:
                if early:
                    A('s_add_u32 s48, s48, s41')
                else:
                    A(f's_add_u32 s48, s48, {8 * 3456}')
        A(f's_add_u32 s48, {"s39" if early else "s40"}, {81920 * t}')
        srd = 's[28:31]' if early else 's[20:23]'
        for ii in range(5):
            A(f's_add_u32 m0, s47, {slot + ii * 1024}')
            A(f'buffer_load_dwordx4 v{V_BD + ii}, {srd}, s48 offen lds')

    def compute(t):
        s = t % 4
        ra = V_RA + (4 if s >= 2 else 0)
        so = (s % 2) * SLOT
        acc = ACC1 if t < 10 else ACC2
        first = t in (0, 10)
        for ks in range(2):
            for rt in range(2):
                f = AF + 8 * ks + 4 * rt
                A(f'ds_read_b128 v[{f}:{f + 3}], v{ra + ks} offset:{so + rt * 2048}')
            for nt in range(5):
                f = BF + 20 * ks + 4 * nt
                if nt < 4:
                    A(f'ds_read_b64_tr_b16 v[{f}:{f + 1}], v{ra + 2} offset:{so + ks * 5120 + 32 * nt}')
                    A(f'ds_read_b64_tr_b16 v[{f + 2}:{f + 3}], v{ra + 2} offset:{so + ks * 5120 + 640 + 32 * nt}')
                else:
                    A(f'ds_read_b64_tr_b16 v[{f}:{f + 1}], v{ra + 3} offset:{so + ks * 5120}')
                    A(f'ds_read_b64_tr_b16 v[{f + 2}:{f + 3}], v{ra + 3} offset:{so + ks * 5120 + 640}')
        for ks in range(2):
            for nt in range(5):
                done = 12 * ks + 2 + 2 * (nt + 1)
                A(f's_waitcnt lgkmcnt({min(15, 24 - done)})')
                for rt in range(2):
                    d = acc + 4 * (5 * rt + nt)
                    fa = AF + 8 * ks + 4 * rt
                    fb = BF + 20 * ks + 4 * nt
                    c = '0' if (first and ks == 0) else f'v[{d}:{d + 3}]'
                    A(f'v_mfma_f32_16x16x32_bf16 v[{d}:{d + 3}], v[{fb}:{fb + 3}], v[{fa}:{fa + 3}], {c}')

    for t in range(3):
        issue(t)
    for t in range(NST):
        rem = min(2, NST - 1 - t)
        A(f's_waitcnt vmcnt({9 * rem})')
        A('s_barrier')
        if t + 3 < NST:
            issue(t + 3)
        if t == NST - 1:
            A('s_movk_i32 s49, 20480')
            for rt in range(2):
                for nt in range(5):
                    r = XR + 2 * (5 * rt + nt)
                    A(f'buffer_load_dwordx2 v[{r}:{r + 1}], v{V_X}, s[12:15], {"s49" if rt else "0"} offen offset:{nt * 32}')
            A('s_cmp_eq_u32 s36, 1')
            A(f's_cbranch_scc1 {name}_skip_last')
        compute(t)
    A.flush()
    A.label(f'{name}_skip_last')
    A('s_barrier')
    A(f'v_lshlrev_b32 v{V_T}, 4, v{V_LANE}')
    A('s_mul_i32 s44, s35, 10240')
    A(f'v_add_u32 v{V_T}, s44, v{V_T}')
    A('s_cmp_eq_u32 s36, 0')
    A(f's_cbranch_scc1 {name}_half0')
    for j in range(40):
        A(f'v_add_f32 v{ACC2 + j}, v{ACC1 + j}, v{ACC2 + j}')
    for tl in range(10):
        A(f'ds_write_b128 v{V_T}, v[{ACC2 + 4 * tl}:{ACC2 + 4 * tl + 3}] offset:{tl * 1024}')
    A('s_waitcnt lgkmcnt(0)')
    A('s_barrier')
    A('s_endpgm')
    A.label(f'{name}_half0')
    A('s_barrier')
    for tl in range(10):
        A(f'ds_read_b128 v[{RED + 4 * tl}:{RED + 4 * tl + 3}], v{V_T} offset:{tl * 1024}')
    A('s_waitcnt vmcnt(0) lgkmcnt(0)')
    A(f's_mov_b32 s44, {NLOG2E}')
    A('s_mov_b32 s45, 0xffff0000')
    for tl in range(10):
        rt, nt = tl // 5, tl % 5
        xr = XR + 2 * tl
        xs = V_T + 8
        A(f'v_lshlrev_b32 v{xs}, 16, v{xr}')
        A(f'v_and_b32 v{xs + 1}, s45, v{xr}')
        A(f'v_lshlrev_b32 v{xs + 2}, 16, v{xr + 1}')
        A(f'v_and_b32 v{xs + 3}, s45, v{xr + 1}')
        for i in range(4):
            y = ACC2 + 4 * tl + i
            s_ = ACC1 + 4 * tl + i
            t = V_T + 1 + i
            A(f'v_add_f32 v{y}, v{y}, v{RED + 4 * tl + i}')
            A(f'v_mul_f32 v{t}, s44, v{y}')
            A(f'v_exp_f32 v{t}, v{t}')
            A(f'v_add_f32 v{t}, 1.0, v{t}')
            A(f'v_rcp_f32 v{t}, v{t}')
            A(f'v_mul_f32 v{t}, v{t}, v{y}')
            A(f'v_fma_f32 v{xs + i}, v{s_}, v{t}, v{xs + i}')
        A(f'v_cvt_pk_bf16_f32 v{xr}, v{xs}, v{xs + 1}')
        A(f'v_cvt_pk_bf16_f32 v{xr + 1}, v{xs + 2}, v{xs + 3}')
        A(f'buffer_store_dwordx2 v[{xr}:{xr + 1}], v{V_X}, s[24:27], {"s49" if rt else "0"} offen offset:{nt * 32}')
    A.label(f'{name}_end')
    A('s_endpgm')
```

```python
OFF_PQ = 0
OFF_H = OFF_PQ + 2048 * 640 * 2
OFF_KVP = OFF_H + 2048 * 1728 * 2
OFF_ZP = OFF_KVP + 16 * 32 * 400 * 4
OFF_AP = OFF_ZP + 16 * 640 * 4
OFF_WP = OFF_AP + 2048 * 640 * 2
WS_END = OFF_WP + 640 * 640 * 2
```

```python
import sys
from asmlib import Asm
from layout import *
import k1, k15, k2

NAME = "recurrent_scan__linear_attn_block__glu_gated_glu__prompt"
hdr = open(f"cdna_kernels/{NAME}.s.ref").read().split("; Override launch geometry")[0]

def kd(name, vgpr, accum, sgpr=102):
    return f""".p2align 6
.amdhsa_kernel {name}
  .amdhsa_next_free_vgpr {vgpr}
  .amdhsa_next_free_sgpr {sgpr}
  .amdhsa_accum_offset {accum}
  .amdhsa_group_segment_fixed_size 0
  .amdhsa_kernarg_size 80
  .amdhsa_user_sgpr_count 2
  .amdhsa_user_sgpr_kernarg_segment_ptr 1
  .amdhsa_system_sgpr_workgroup_id_x 1
.end_amdhsa_kernel
"""

A = Asm()
k1.gen_k1(A, "k1_kernel")
A2 = Asm()
k15.gen_k15(A2, "k15_kernel")
A3 = Asm()
k2.gen_k2(A3, "k2_kernel")
out = hdr
out += f"; @launch kernel=k1_kernel grid=(256,1,1) block=(256,1,1) lds={k1.K1_LDS}\n"
out += f"; @launch kernel=k15_kernel grid=(384,1,1) block=(256,1,1) lds={k15.K15_LDS}\n"
out += f"; @launch kernel=k2_kernel grid=(256,1,1) block=(256,1,1) lds={k2.K2_LDS}\n"
out += '.amdgcn_target "amdgcn-amd-amdhsa--gfx950"\n.text\n'
out += A.text() + A2.text() + A3.text()
out += '.section .rodata,"a"\n'
out += kd("k1_kernel", k1.K1_VGPR + k1.K1_AGPR, k1.K1_VGPR)
out += kd("k15_kernel", 224, 224)
out += kd("k2_kernel", k2.K2_VGPR, k2.K2_VGPR)
dst = sys.argv[1] if len(sys.argv) > 1 else f"cdna_kernels/{NAME}.s"
open(dst, "w").write(out)
print("nops:", A.nops, A2.nops, A3.nops, "bytes", len(out))
```

```python
from asmlib import Asm
from layout import *
import os
FL = os.environ.get('K1FLAGS', '').split(',')

LOG2E = 0x3fb8aa3b
NLOG2E = 0xbfb8aa3b
EPS6 = 0x358637bd
EPS5 = 0x3727c5ac
CHUNK = 40960
EXB = 3 * CHUNK
K1_LDS = EXB + 2 * 16384
STAMP = 'stamp' in FL
STAMP_LDS = K1_LDS
if STAMP:
    K1_LDS += 2048
STAMP_OFF = 16 << 20

V_LANE, V_L31, V_HF = 1, 2, 3
V_DMA, V_LRD, V_RD, V_OUT = 4, 5, 6, 7
V_XR = 8
V_XD = 12
VKV = 8
V_EXW = 13
V_SP, V_SL = 14, 15
ACC_A, ACC_C = 16, 32
SS = 48
FR = 64
TMP = 80
XF = 96
K1_VGPR = 256
K1_AGPR = 96


def stamp(A):
    if not STAMP:
        return
    A('s_memtime s[60:61]')
    A('s_waitcnt lgkmcnt(0)')
    A('v_accvgpr_write_b32 a80, s60')
    A('v_accvgpr_write_b32 a81, s61')
    A('s_nop 1')
    A(f'ds_write_b64 v{V_SP}, a[80:81]')
    A(f'v_add_u32 v{V_SP}, 8, v{V_SP}')
    A('s_waitcnt lgkmcnt(0)')


def stamp_init(A):
    if not STAMP:
        return
    A('s_lshl_b32 s62, s34, 9')
    A(f's_add_u32 s62, s62, {STAMP_LDS}')
    A(f'v_mov_b32 v{V_SP}, s62')
    A('v_accvgpr_write_b32 a80, 0')
    A('v_accvgpr_write_b32 a81, 0')
    A(f'v_lshl_add_u32 v{V_SL}, v{V_LANE}, 3, v{V_SP}')
    A('s_nop 1')
    A(f'ds_write_b64 v{V_SL}, a[80:81]')
    A('s_waitcnt lgkmcnt(0)')


def stamp_dump(A):
    if not STAMP:
        return
    stamp(A)
    A(f'ds_read_b64 a[80:81], v{V_SL}')
    A('s_lshl_b32 s62, s2, 2')
    A('s_add_u32 s62, s62, s34')
    A('s_lshl_b32 s62, s62, 9')
    A(f's_add_u32 s62, s62, {STAMP_OFF}')
    A(f'v_lshlrev_b32 v{V_SL}, 3, v{V_LANE}')
    A('s_waitcnt lgkmcnt(0)')
    A(f'buffer_store_dwordx2 a[80:81], v{V_SL}, s[28:31], s62 offen')


def dma_ops(srd, scol):
    ops = []
    for t in range(10):
        g = []
        if t == 0:
            g.append(f's_mov_b32 s42, {scol}')
        else:
            g.append('s_add_u32 s42, s42, s38')
        g.append(f's_add_u32 m0, s40, {t * 4096}')
        g.append(f'buffer_load_dwordx4 v{V_DMA}, {srd}, s42 offen lds')
        ops.append(g)
    return ops


def advance_bufs(A):
    A(f's_add_u32 s39, s39, {CHUNK}')
    A(f's_cmp_ge_u32 s39, {3 * CHUNK}')
    A(f's_cselect_b32 s39, 0, s39')
    A(f's_add_u32 s45, s45, {CHUNK}')
    A(f's_cmp_ge_u32 s45, {3 * CHUNK}')
    A(f's_cselect_b32 s45, 0, s45')
    A(f's_add_u32 s40, s45, s46')


def mfma_chunk(A, acc, transposed, fillers=(), dma=None, PF=3):
    A(f'v_add_u32 v{V_RD}, s39, v{V_LRD}')
    fillers = list(fillers)
    nf = len(fillers)
    NG = 33

    def rd(s):
        f = FR + 4 * (s % 4)
        A(f'ds_read_b64_tr_b16 v[{f}:{f + 1}], v{V_RD} offset:{s * 1024}')
        A(f'ds_read_b64_tr_b16 v[{f + 2}:{f + 3}], v{V_RD} offset:{s * 1024 + 256}')
    for s in range(PF):
        rd(s)
    done = 0
    for s in range(40):
        if s + PF < 40:
            rd(s + PF)
        A(f's_waitcnt lgkmcnt({2 * min(PF, 39 - s)})')
        f = FR + 4 * (s % 4)
        c = '0' if s == 0 else f'v[{acc}:{acc + 15}]'
        x = XF + 4 * s
        if transposed:
            A(f'v_mfma_f32_32x32x16_bf16 v[{acc}:{acc + 15}], v[{f}:{f + 3}], v[{x}:{x + 3}], {c}')
        else:
            A(f'v_mfma_f32_32x32x16_bf16 v[{acc}:{acc + 15}], v[{x}:{x + 3}], v[{f}:{f + 3}], {c}')
        if dma is not None and s % 4 == 1:
            for i in dma[s // 4]:
                A(i)
        if 1 <= s <= NG:
            want = (nf * s + NG - 1) // NG
            while done < want:
                A(fillers[done])
                done += 1
    assert done == nf


def phi_ops(dst, src, t1):
    return [f'v_mul_f32 v{t1}, s43, v{src}',
            f'v_min_f32 v{t1}, 0, v{t1}',
            f'v_exp_f32 v{t1}, v{t1}',
            f'v_max_f32 v{dst}, 0, v{src}',
            f'v_add_f32 v{dst}, v{dst}, v{t1}',
            f'v_add_f32 v{dst}, s44, v{dst}']


def store_rows_ops(vals, soff, inst_off):
    P = TMP + 8
    ops = []
    for j in range(8):
        ops.append(f'v_cvt_pk_bf16_f32 v{P + j}, v{vals + 2 * j}, v{vals + 2 * j + 1}')
    for pr in range(2):
        a, b = P + 4 * pr, P + 4 * pr + 2
        ops.append(f'v_permlane32_swap_b32 v{a}, v{b}')
        ops.append(f'v_permlane32_swap_b32 v{a + 1}, v{b + 1}')
    for pr in range(2):
        ops.append(f'buffer_store_dwordx4 v[{P + 4 * pr}:{P + 4 * pr + 3}], v{V_OUT}, s[28:31], {soff} offen offset:{inst_off + 32 * pr}')
    return ops


def head(A, nwait):
    stamp(A)
    A(f's_waitcnt vmcnt({nwait})')
    A('s_barrier')
    stamp(A)


def gen_k1(A, name):
    A.raw(f'.globl {name}')
    A.raw('.p2align 8')
    A.raw(f'.type {name},@function')
    A.label(name)
    A('s_cmp_ge_u32 s2, 256')
    A(f's_cbranch_scc1 {name}_end')
    A('s_load_dwordx4 s[4:7], s[0:1], 0')
    A('s_load_dwordx4 s[8:11], s[0:1], 32')
    A('s_load_dwordx2 s[12:13], s[0:1], 72')
    A('s_and_b32 s42, s2, 7')
    A('s_lshr_b32 s43, s2, 3')
    A('s_and_b32 s32, s43, 15')
    A('s_lshr_b32 s43, s43, 4')
    A('s_lshl_b32 s33, s42, 1')
    A('s_add_u32 s33, s33, s43')
    A(f'v_and_b32 v{V_LANE}, 63, v0')
    A(f'v_lshrrev_b32 v{TMP}, 6, v0')
    A(f'v_and_b32 v{V_L31}, 31, v0')
    A(f'v_readfirstlane_b32 s34, v{TMP}')
    A(f'v_lshrrev_b32 v{V_HF}, 5, v{V_LANE}')
    A(f'v_lshrrev_b32 v{TMP}, 3, v{V_LANE}')
    A(f'v_mul_u32_u24 v{TMP}, 1280, v{TMP}')
    A(f'v_lshrrev_b32 v{TMP + 1}, 4, v{V_LANE}')
    A(f'v_and_b32 v{TMP + 2}, 7, v{V_LANE}')
    A(f'v_xor_b32 v{TMP + 2}, v{TMP + 2}, v{TMP + 1}')
    A(f'v_lshl_add_u32 v{V_XD}, v{TMP + 2}, 4, v{TMP}')
    A(f'v_xor_b32 v{V_XD + 1}, 64, v{V_XD}')
    A('s_waitcnt lgkmcnt(0)')
    A('s_mov_b32 s16, s4'); A('s_and_b32 s17, s5, 0xffff'); A(f's_mov_b32 s18, {2048 * 1280}'); A('s_mov_b32 s19, 0x20000')
    A('s_lshl_b32 s42, s32, 7'); A('s_lshl_b32 s43, s34, 5'); A('s_add_u32 s49, s42, s43')
    A('s_mul_i32 s50, s49, 1280')
    A('s_mul_i32 s51, s34, 20480'); A(f's_add_u32 s51, s51, {CHUNK}')

    def x_round(rho):
        for j in range(5):
            for o in range(4):
                A(f's_add_u32 m0, s51, {j * 4096 + o * 1024}')
                A(f's_add_u32 s42, s50, {o * 10240 + (5 * rho + j) * 128}')
                A(f'buffer_load_dwordx4 v{V_XD + (o & 1)}, s[16:19], s42 offen lds')
    x_round(0)
    A('s_mov_b32 s28, s12'); A('s_and_b32 s29, s13, 0xffff'); A(f's_mov_b32 s30, {(32 << 20) if STAMP else WS_END}'); A('s_mov_b32 s31, 0x20000')
    A('s_and_b32 s7, s7, 0xffff'); A('s_and_b32 s9, s9, 0xffff'); A('s_and_b32 s11, s11, 0xffff')
    A('s_cmp_lt_u32 s33, 6')
    A('s_cselect_b32 s20, s6, s8'); A('s_cselect_b32 s21, s7, s9')
    A('s_cselect_b32 s24, s6, s10'); A('s_cselect_b32 s25, s7, s11')
    A(f's_mov_b32 s22, {640 * 3456}'); A(f's_cselect_b32 s22, {640 * 3840}, s22')
    A('s_mov_b32 s26, s22')
    A('s_mov_b32 s23, 0x20000'); A('s_mov_b32 s27, 0x20000')
    A('s_mov_b32 s47, 3456'); A('s_cselect_b32 s47, 3840, s47')
    A('s_lshl_b32 s38, s47, 6')
    A('s_mul_i32 s35, s33, 640'); A('s_mov_b32 s36, 64'); A('s_mov_b32 s37, 128'); A('s_mov_b32 s41, 5')
    A('s_cmp_lt_u32 s33, 2')
    A(f's_cbranch_scc1 {name}_cols_done')
    A('s_sub_u32 s42, s33, 2'); A('s_mul_i32 s35, s42, 320'); A('s_add_u32 s35, s35, 1280')
    A('s_mov_b32 s36, 1280'); A('s_mov_b32 s37, 64')
    A('s_cmp_lt_u32 s33, 6')
    A(f's_cbranch_scc1 {name}_cols_done')
    A('s_sub_u32 s42, s33, 6')
    A('s_mul_i32 s35, s42, 6'); A('s_mul_i32 s43, s42, 5'); A('s_add_u32 s43, s43, 4')
    A('s_cmp_lt_u32 s42, 4')
    A('s_cselect_b32 s35, s35, s43'); A('s_cselect_b32 s41, 6, 5')
    A('s_lshl_b32 s35, s35, 6')
    A('s_mov_b32 s36, 0'); A('s_mov_b32 s37, 64')
    A.label(f'{name}_cols_done')
    stamp_init(A)
    stamp(A)
    A(f'v_lshrrev_b32 v{TMP + 2}, 2, v{V_LANE}')
    A('s_lshl_b32 s43, s34, 4')
    A(f'v_add_u32 v{TMP + 2}, s43, v{TMP + 2}')
    A(f'v_mul_lo_u32 v{V_DMA}, v{TMP + 2}, s47')
    A(f'v_and_b32 v{TMP + 2}, 3, v{V_LANE}')
    A(f'v_lshl_add_u32 v{V_DMA}, v{TMP + 2}, 4, v{V_DMA}')
    A('s_lshl_b32 s46, s34, 10')
    A('s_mov_b32 s40, s46')
    for g in dma_ops('s[20:23]', 's35'):
        for i in g:
            A(i)
    A(f'v_lshlrev_b32 v{V_LRD}, 3, v{TMP + 2}')
    A(f'v_bfe_u32 v{TMP + 3}, v{V_LANE}, 2, 2')
    A(f'v_lshl_add_u32 v{V_LRD}, v{TMP + 3}, 6, v{V_LRD}')
    A(f'v_bfe_u32 v{TMP + 3}, v{V_LANE}, 4, 1')
    A(f'v_lshl_add_u32 v{V_LRD}, v{TMP + 3}, 5, v{V_LRD}')
    A(f'v_lshl_add_u32 v{V_LRD}, v{V_HF}, 9, v{V_LRD}')
    A(f'v_add_u32 v{TMP}, s49, v{V_L31}')
    A('s_cmp_lt_u32 s33, 6')
    A('s_mov_b32 s43, 3456'); A('s_cselect_b32 s43, 1280, s43')
    A(f'v_mul_lo_u32 v{V_OUT}, v{TMP}, s43')
    A(f'v_lshl_add_u32 v{V_OUT}, v{V_HF}, 4, v{V_OUT}')
    A(f'v_bfe_u32 v{TMP + 1}, v{V_L31}, 1, 3')
    A(f'v_lshlrev_b32 v{TMP + 2}, 7, v{V_L31}')
    A(f'v_add_u32 v{TMP + 2}, s51, v{TMP + 2}')
    for q in range(4):
        A(f'v_add_u32 v{TMP + 3}, {2 * q}, v{V_HF}')
        A(f'v_xor_b32 v{TMP + 3}, v{TMP + 3}, v{TMP + 1}')
        A(f'v_lshl_add_u32 v{V_XR + q}, v{TMP + 3}, 4, v{TMP + 2}')
    A(f's_mov_b32 s43, {LOG2E}'); A(f's_mov_b32 s44, {EPS6}')
    ONES = TMP + 6
    A(f'v_mov_b32 v{ONES}, 0x3f803f80')
    acc = [TMP + 8 + i for i in range(8)]
    for a in acc:
        A(f'v_mov_b32 v{a}, 0')

    def x_read(rho):
        for s in range(20 * rho, 20 * rho + 20):
            A(f'ds_read_b128 v[{XF + 4 * s}:{XF + 4 * s + 3}], v{V_XR + (s & 3)} offset:{((s >> 2) % 5) * 4096}')

    def stats(rho):
        for d in range(80 * rho, 80 * rho + 80):
            A(f'v_dot2_f32_bf16 v{acc[d % 4]}, v{XF + d}, v{ONES}, v{acc[d % 4]}')
            A(f'v_dot2_f32_bf16 v{acc[4 + d % 4]}, v{XF + d}, v{XF + d}, v{acc[4 + d % 4]}')
    stamp(A)
    A('s_waitcnt vmcnt(10)')
    stamp(A)
    x_read(0)
    A('s_waitcnt lgkmcnt(0)')
    x_round(1)
    stats(0)
    stamp(A)
    A('s_waitcnt vmcnt(0)')
    stamp(A)
    x_read(1)
    A('s_waitcnt lgkmcnt(0)')
    A('s_barrier')
    A(f's_add_u32 s40, s46, {CHUNK}')
    A('s_add_u32 s48, s35, s36')
    for g in dma_ops('s[24:27]', 's48'):
        for i in g:
            A(i)
    A(f's_mov_b32 s45, {2 * CHUNK}')
    A('s_add_u32 s40, s45, s46')
    A('s_mov_b32 s39, 0')
    stats(1)
    A('s_nop 3')
    A(f'v_add_f32 v{acc[0]}, v{acc[0]}, v{acc[1]}'); A(f'v_add_f32 v{acc[2]}, v{acc[2]}, v{acc[3]}')
    A(f'v_add_f32 v{acc[4]}, v{acc[4]}, v{acc[5]}'); A(f'v_add_f32 v{acc[6]}, v{acc[6]}, v{acc[7]}')
    A(f'v_add_f32 v{acc[0]}, v{acc[0]}, v{acc[2]}'); A(f'v_add_f32 v{acc[4]}, v{acc[4]}, v{acc[6]}')
    A(f'v_mov_b32 v{acc[1]}, v{acc[0]}'); A(f'v_mov_b32 v{acc[5]}, v{acc[4]}')
    A(f'v_permlane32_swap_b32 v{acc[0]}, v{acc[1]}')
    A(f'v_permlane32_swap_b32 v{acc[4]}, v{acc[5]}')
    A(f'v_add_f32 v{acc[0]}, v{acc[0]}, v{acc[1]}')
    A(f'v_add_f32 v{acc[4]}, v{acc[4]}, v{acc[5]}')
    A(f's_mov_b32 s48, 0x3acccccd')
    A(f'v_mul_f32 v{acc[0]}, s48, v{acc[0]}')
    A(f'v_mul_f32 v{acc[4]}, s48, v{acc[4]}')
    A(f'v_fma_f32 v{acc[4]}, -v{acc[0]}, v{acc[0]}, v{acc[4]}')
    A(f'v_max_f32 v{acc[4]}, 0, v{acc[4]}')
    A(f'v_add_f32 v{acc[4]}, {EPS5}, v{acc[4]}')
    A(f'v_rsq_f32 v{acc[4]}, v{acc[4]}')
    A(f'v_mul_f32 v{acc[0]}, v{acc[0]}, v{acc[4]}')
    A(f'v_sub_f32 v{acc[0]}, 0, v{acc[0]}')
    A(f'v_mov_b32 v{acc[5]}, v{acc[4]}')
    A(f'v_mov_b32 v{acc[1]}, v{acc[0]}')
    assert acc[0] % 2 == 0 and acc[4] % 2 == 0
    A(f's_mov_b32 s48, 0xffff0000')
    for d in range(160):
        t = SS + 2 * (d % 8)
        A(f'v_lshlrev_b32 v{t}, 16, v{XF + d}')
        A(f'v_and_b32 v{t + 1}, s48, v{XF + d}')
        A(f'v_pk_fma_f32 v[{t}:{t + 1}], v[{t}:{t + 1}], v[{acc[4]}:{acc[5]}], v[{acc[0]}:{acc[1]}]')
        A(f'v_cvt_pk_bf16_f32 v{XF + d}, v{t}, v{t + 1}')
    stamp(A)
    A('s_cmp_lt_u32 s33, 2')
    A(f's_cbranch_scc1 {name}_q')
    A('s_cmp_lt_u32 s33, 6')
    A(f's_cbranch_scc1 {name}_kv')

    def sig_ops():
        ops = []
        for i in range(16):
            t = SS + i
            ops += [f'v_mul_f32 v{t}, s52, v{ACC_A + i}',
                    f'v_exp_f32 v{t}, v{t}',
                    f'v_add_f32 v{t}, 1.0, v{t}',
                    f'v_rcp_f32 v{t}, v{t}']
        out = []
        for b in range(0, 16, 4):
            for k in range(4):
                for i in range(b, b + 4):
                    out.append(ops[4 * i + k])
        return out

    def h_ops():
        ops = [f'v_mul_f32 v{ACC_C + i}, v{SS + i}, v{ACC_C + i}' for i in range(16)]
        return ops + store_rows_ops(ACC_C, 's53', 0)

    def gu_pair(first, prefetch):
        A('s_add_u32 s48, s35, s37')
        head(A, 10)
        mfma_chunk(A, ACC_A, True, [] if first else h_ops(), dma_ops('s[20:23]', 's48') if prefetch else None)
        advance_bufs(A)
        head(A, 10 if prefetch else 0)
        mfma_chunk(A, ACC_C, True, sig_ops(), dma_ops('s[24:27]', 's48') if prefetch else None)
        advance_bufs(A)
        A(f's_add_u32 s53, s35, {OFF_H}')
        A('s_mov_b32 s35, s48')
    A(f's_mov_b32 s52, {NLOG2E}')
    gu_pair(True, True)
    A('s_sub_u32 s41, s41, 2')
    A.flush()
    A.label(f'{name}_gu_loop')
    gu_pair(False, True)
    A('s_sub_u32 s41, s41, 1')
    A('s_cmp_lg_u32 s41, 0')
    A.flush()
    A(f's_cbranch_scc1 {name}_gu_loop')
    gu_pair(False, False)
    for i in h_ops():
        A(i)
    stamp_dump(A)
    A('s_endpgm')

    A.label(f'{name}_q')

    def q_ops(acc, soff, off):
        ops = []
        for i in range(16):
            ops += phi_ops(acc + i, acc + i, TMP + (i % 8))
        out = []
        for b in range(0, 16, 4):
            for k in range(6):
                for i in range(b, b + 4):
                    out.append(ops[6 * i + k])
        return out + store_rows_ops(acc, soff, off)

    def q_pair(first, prefetch):
        A('s_add_u32 s48, s35, s37')
        A('s_add_u32 s49, s48, s36')
        head(A, 10)
        mfma_chunk(A, ACC_A, True, [] if first else q_ops(ACC_C, 's53', 64), dma_ops('s[20:23]', 's48') if prefetch else None)
        advance_bufs(A)
        A(f's_add_u32 s53, s35, {OFF_PQ}')
        head(A, 10 if prefetch else 0)
        mfma_chunk(A, ACC_C, True, q_ops(ACC_A, 's53', 0), dma_ops('s[24:27]', 's49') if prefetch else None)
        advance_bufs(A)
        A('s_mov_b32 s35, s48')
    q_pair(True, True)
    A('s_sub_u32 s41, s41, 2')
    A.flush()
    A.label(f'{name}_q_loop')
    q_pair(False, True)
    A('s_sub_u32 s41, s41, 1')
    A('s_cmp_lg_u32 s41, 0')
    A.flush()
    A(f's_cbranch_scc1 {name}_q_loop')
    q_pair(False, False)
    for i in q_ops(ACC_C, 's53', 64):
        A(i)
    stamp_dump(A)
    A('s_endpgm')

    A.label(f'{name}_kv')
    A('s_movk_i32 s48, 3277')
    A('s_movk_i32 s49, 320')
    for cv in range(5):
        t = TMP
        A(f'v_add_u32 v{t}, {32 * cv}, v{V_L31}')
        A(f'v_mul_lo_u32 v{t + 1}, v{t}, s48')
        A(f'v_lshrrev_b32 v{t + 1}, 16, v{t + 1}')
        A(f'v_mul_u32_u24 v{t + 1}, 20, v{t + 1}')
        A(f'v_sub_u32 v{t}, v{t}, v{t + 1}')
        A(f'v_lshlrev_b32 v{t}, 2, v{t}')
        A(f'v_mul_lo_u32 v{t + 1}, v{V_HF}, s49')
        A(f'v_add_u32 v{VKV + cv}, v{t}, v{t + 1}')
    A(f'v_lshlrev_b32 v{V_EXW}, 4, v{V_LANE}')
    A(f'v_add_u32 v{V_EXW}, {EXB}, v{V_EXW}')
    V_EXO = V_OUT
    A('s_lshl_b32 s48, s34, 12')
    A(f'v_add_u32 v{V_EXO}, s48, v{V_EXW}')
    for j in range(4):
        A(f'v_accvgpr_write_b32 a{84 + j}, v{ONES}')
    A('s_sub_u32 s48, s33, 2')
    A('s_lshl_b32 s54, s32, 5'); A('s_lshl_b32 s42, s48, 3'); A('s_add_u32 s54, s54, s42')
    A('s_mul_i32 s54, s54, 1600'); A(f's_add_u32 s54, s54, {OFF_KVP}')
    A('s_mul_i32 s55, s32, 2560'); A('s_mul_i32 s42, s48, 640'); A('s_add_u32 s55, s55, s42')
    A(f's_add_u32 s55, s55, {OFF_ZP}')
    V_ZO = V_SP if not STAMP else None
    PK, PV = SS, SS + 8
    D2 = 64

    def k_ops():
        ops = []
        for i in range(16):
            ops += phi_ops(ACC_A + i, ACC_A + i, TMP + (i % 8))
        out = []
        for b in range(0, 16, 4):
            for k in range(6):
                for i in range(b, b + 4):
                    out.append(ops[6 * i + k])
        for j in range(8):
            out.append(f'v_cvt_pk_bf16_f32 v{PK + j}, v{ACC_A + 2 * j}, v{ACC_A + 2 * j + 1}')
        return out

    def v_ops(c):
        sl = (c % 2) * 16384
        out = []
        for j in range(8):
            out.append(f'v_cvt_pk_bf16_f32 v{PV + j}, v{ACC_C + 2 * j}, v{ACC_C + 2 * j + 1}')
        out.append(f'ds_write_b128 v{V_EXO}, v[{PK}:{PK + 3}] offset:{sl}')
        out.append(f'ds_write_b128 v{V_EXO}, v[{PK + 4}:{PK + 7}] offset:{sl + 1024}')
        out.append(f'ds_write_b128 v{V_EXO}, v[{PV}:{PV + 3}] offset:{sl + 2048}')
        out.append(f'ds_write_b128 v{V_EXO}, v[{PV + 4}:{PV + 7}] offset:{sl + 3072}')
        return out

    def job_block(ck, cv):
        for u in range(4):
            for h in range(2):
                A(f'ds_read_b128 a[{8 * u + 4 * h}:{8 * u + 4 * h + 3}], v{V_EXW} offset:{(ck % 2) * 16384 + u * 4096 + h * 1024}')
                if cv is not None:
                    A(f'ds_read_b128 a[{32 + 8 * u + 4 * h}:{32 + 8 * u + 4 * h + 3}], v{V_EXW} offset:{(cv % 2) * 16384 + u * 4096 + 2048 + h * 1024}')
        n = 0
        per = 2 if cv is not None else 1
        for u in range(4):
            for h in range(2):
                n += 1
                A(f's_waitcnt lgkmcnt({per * (8 - n)})')
                b = f'a[{32 + 8 * u + 4 * h}:{32 + 8 * u + 4 * h + 3}]' if cv is not None else 'a[84:87]'
                c = '0' if n == 1 else f'a[{D2}:{D2 + 15}]'
                A(f'v_mfma_f32_32x32x16_bf16 a[{D2}:{D2 + 15}], a[{8 * u + 4 * h}:{8 * u + 4 * h + 3}], {b}, {c}')
        if cv is None:
            A(f'v_lshlrev_b32 v{TMP}, 4, v{V_HF}')
            A(f's_add_u32 s42, s55, {128 * ck}')
            A('s_mov_b32 exec_lo, 1'); A('s_mov_b32 exec_hi, 1')
            for q in range(4):
                A(f'buffer_store_dwordx4 a[{D2 + 4 * q}:{D2 + 4 * q + 3}], v{TMP}, s[28:31], s42 offen offset:{32 * q}')
            A('s_mov_b64 exec, -1')
            return
        A(f's_add_u32 s42, s54, {32 * ck * 80}')
        for i in range(16):
            masks = []
            for hf in range(2):
                nk = 32 * ck + 8 * (i >> 2) + 4 * hf + (i & 3)
                m = 0
                for l in range(32):
                    if (32 * cv + l) // 20 == nk // 20:
                        m |= 1 << l
                masks.append(m)
            if not (masks[0] or masks[1]):
                continue
            A(f's_mov_b32 exec_lo, 0x{masks[0]:x}')
            A(f's_mov_b32 exec_hi, 0x{masks[1]:x}')
            A(f'buffer_store_dword a{D2 + i}, v{VKV + cv}, s[28:31], s42 offen offset:{(8 * (i >> 2) + (i & 3)) * 80}')
        A('s_mov_b64 exec, -1')

    def jobs(c):
        jl = [(c, c), (c, None)]
        if c > 0:
            jl += [(c - 1, c), (c, c - 1)]
        lab = f'{name}_job{c}'
        for w in range(4):
            if w < 3:
                A(f's_cmp_lg_u32 s34, {w}')
                A(f's_cbranch_scc1 {lab}_{w + 1}')
            if w < len(jl):
                job_block(*jl[w])
            if w < 3:
                A.flush()
                A(f's_branch {lab}_done')
                A.label(f'{lab}_{w + 1}')
        A.flush()
        A.label(f'{lab}_done')

    for c in range(5):
        prefetch = c < 4
        A('s_add_u32 s48, s35, s37')
        A('s_add_u32 s49, s48, s36')
        head(A, 10)
        mfma_chunk(A, ACC_A, False, v_ops(c - 1) if c > 0 else [], dma_ops('s[20:23]', 's48') if prefetch else None)
        advance_bufs(A)
        A('s_waitcnt lgkmcnt(0)')
        head(A, 10 if prefetch else 0)
        if c > 0:
            jobs(c - 1)
        mfma_chunk(A, ACC_C, False, k_ops(), dma_ops('s[24:27]', 's49') if prefetch else None)
        advance_bufs(A)
        A('s_mov_b32 s35, s48')
    A('s_barrier')
    for i in v_ops(4):
        A(i)
    A('s_waitcnt lgkmcnt(0)')
    A('s_barrier')
    jobs(4)
    stamp_dump(A)
    A.label(f'{name}_end')
    A('s_endpgm')
```

```python
from asmlib import Asm
from layout import *

SLOT = 36864
HALF = 18432
BOFF = 8192
K2_LDS = 4 * SLOT
NLOG2E = 0xbfb8aa3b
NST = 19
import os
STAMP = 'stamp' in os.environ.get('K2FLAGS', '').split(',')
STAMP_LDS = K2_LDS
if STAMP:
    K2_LDS += 2048
STAMP_OFF = 16 << 20


def stamp(A):
    if not STAMP:
        return
    A('s_memtime s[60:61]')
    A('s_waitcnt lgkmcnt(0)')
    A('v_mov_b32 v236, s60')
    A('v_mov_b32 v237, s61')
    A('ds_write_b64 v238, v[236:237]')
    A('v_add_u32 v238, 8, v238')
    A('s_waitcnt lgkmcnt(0)')


def stamp_init(A):
    if not STAMP:
        return
    A('s_lshl_b32 s62, s34, 9')
    A(f's_add_u32 s62, s62, {STAMP_LDS}')
    A('v_mov_b32 v238, s62')
    A('v_mov_b32 v236, 0')
    A('v_mov_b32 v237, 0')
    A('v_lshl_add_u32 v239, v1, 3, v238')
    A('ds_write_b64 v239, v[236:237]')
    A('s_waitcnt lgkmcnt(0)')


def stamp_dump(A):
    if not STAMP:
        return
    stamp(A)
    A('ds_read_b64 v[236:237], v239')
    A('s_lshl_b32 s62, s2, 2')
    A('s_add_u32 s62, s62, s34')
    A('s_lshl_b32 s62, s62, 9')
    A(f's_add_u32 s62, s62, {STAMP_OFF}')
    A('v_lshlrev_b32 v239, 3, v1')
    A('s_waitcnt lgkmcnt(0)')
    A('buffer_store_dwordx2 v[236:237], v239, s[16:19], s62 offen')

V_LANE = 1
V_AE, V_AH = 2, 3
V_BD = 4
V_RA = 10
V_X = 18
V_T = 20
AF = 40
BF = 56
ACC1 = 96
ACC2 = 136
XR = 176
RED = 196


def gen_k2(A, name):
    A.raw(f'.globl {name}')
    A.raw('.p2align 8')
    A.raw(f'.type {name},@function')
    A.label(name)
    A('s_cmp_ge_u32 s2, 256')
    A(f's_cbranch_scc1 {name}_end')
    A('s_load_dwordx2 s[4:5], s[0:1], 0')
    A('s_load_dwordx4 s[8:11], s[0:1], 48')
    A('s_load_dwordx2 s[6:7], s[0:1], 72')
    A('s_and_b32 s32, s2, 7')
    A('s_lshr_b32 s33, s2, 3')
    A(f'v_and_b32 v{V_LANE}, 63, v0')
    A(f'v_lshrrev_b32 v{V_T}, 6, v0')
    A(f'v_readfirstlane_b32 s34, v{V_T}')
    A('s_waitcnt lgkmcnt(0)')
    A('s_and_b32 s35, s34, 1')
    A('s_lshr_b32 s36, s34, 1')
    A('s_mov_b32 s12, s4'); A('s_and_b32 s13, s5, 0xffff'); A(f's_mov_b32 s14, {2048 * 1280}'); A('s_mov_b32 s15, 0x20000')
    A('s_mov_b32 s16, s6'); A('s_and_b32 s17, s7, 0xffff'); A(f's_mov_b32 s18, {(32 << 20) if STAMP else WS_END}'); A('s_mov_b32 s19, 0x20000')
    A('s_mov_b32 s20, s8'); A('s_and_b32 s21, s9, 0xffff'); A(f's_mov_b32 s22, {1728 * 1280}'); A('s_mov_b32 s23, 0x20000')
    A('s_mov_b32 s24, s10'); A('s_and_b32 s25, s11, 0xffff'); A(f's_mov_b32 s26, {2048 * 1280}'); A('s_mov_b32 s27, 0x20000')
    A('s_cmp_eq_u32 s36, 0')
    A('s_cselect_b32 s28, s16, s20'); A('s_cselect_b32 s29, s17, s21'); A('s_cselect_b32 s30, s18, s22')
    A('s_mov_b32 s31, 0x20000')
    A(f's_mov_b32 s37, {OFF_H + 1152}'); A(f's_cselect_b32 s37, {OFF_AP}, s37')
    A(f's_mov_b32 s38, {OFF_H + 1152}'); A(f's_cselect_b32 s38, {(OFF_H - 1280)}, s38')
    A(f's_mov_b32 s39, {576 * 1280}'); A(f's_cselect_b32 s39, {OFF_WP}, s39')
    A(f's_mov_b32 s40, {576 * 1280}'); A(f's_cselect_b32 s40, {(-819200) & 0xffffffff}, s40')
    A(f's_mov_b32 s41, {8 * 3456}'); A(f's_cselect_b32 s41, {8 * 1280}, s41')
    A('s_lshl_b32 s42, s33, 6'); A('s_lshl_b32 s43, s35, 5'); A('s_add_u32 s42, s42, s43')
    A(f'v_lshrrev_b32 v{V_T}, 3, v{V_LANE}')
    A(f'v_and_b32 v{V_T + 1}, 7, v{V_LANE}')
    A(f'v_xor_b32 v{V_T + 1}, v{V_T + 1}, v{V_T}')
    A(f'v_lshlrev_b32 v{V_T + 1}, 4, v{V_T + 1}')
    A(f'v_add_u32 v{V_T}, s42, v{V_T}')
    A('s_movk_i32 s43, 1280')
    A(f'v_mul_lo_u32 v{V_AE}, v{V_T}, s43')
    A('s_movk_i32 s43, 3456')
    A(f'v_mul_lo_u32 v{V_AH}, v{V_T}, s43')
    A(f'v_add_u32 v{V_AE}, v{V_AE}, v{V_T + 1}')
    A(f'v_add_u32 v{V_AH}, v{V_AH}, v{V_T + 1}')
    A('s_cmp_eq_u32 s36, 0')
    A('s_cselect_b64 vcc, -1, 0')
    A(f'v_cndmask_b32 v{V_AE}, v{V_AH}, v{V_AE}, vcc')
    A('s_mul_i32 s43, s35, 320')
    A('s_movk_i32 s44, 6554')
    A('s_mul_i32 s45, s32, 160')
    for ii in range(5):
        t = V_T
        A(f'v_add_u32 v{t}, s43, v{V_LANE}')
        A(f'v_add_u32 v{t}, {64 * ii}, v{t}')
        A(f'v_mul_lo_u32 v{t + 1}, v{t}, s44')
        A(f'v_lshrrev_b32 v{t + 1}, 16, v{t + 1}')
        A(f'v_mul_u32_u24 v{t + 2}, 10, v{t + 1}')
        A(f'v_sub_u32 v{t + 2}, v{t}, v{t + 2}')
        A(f'v_bfe_u32 v{t + 3}, v{t + 1}, 3, 1')
        A(f'v_lshlrev_b32 v{t + 3}, 1, v{t + 3}')
        A(f'v_sub_u32 v{t + 2}, v{t + 2}, v{t + 3}')
        A(f'v_add_u32 v{t + 3}, 10, v{t + 2}')
        A(f'v_cmp_gt_i32 vcc, 0, v{t + 2}')
        A(f'v_cndmask_b32 v{t + 2}, v{t + 2}, v{t + 3}, vcc')
        A(f'v_lshlrev_b32 v{t + 2}, 4, v{t + 2}')
        A(f'v_mul_u32_u24 v{t + 1}, 1280, v{t + 1}')
        A(f'v_add_u32 v{t + 1}, v{t + 1}, v{t + 2}')
        A(f'v_add_u32 v{V_BD + ii}, s45, v{t + 1}')
    A(f's_mul_i32 s43, s36, {HALF}')
    A(f'v_and_b32 v{V_T}, 15, v{V_LANE}')
    A('s_lshl_b32 s44, s35, 5')
    A(f'v_add_u32 v{V_T}, s44, v{V_T}')
    A(f'v_lshlrev_b32 v{V_T}, 7, v{V_T}')
    A(f'v_lshrrev_b32 v{V_T + 1}, 4, v{V_LANE}')
    A(f'v_and_b32 v{V_T + 2}, 7, v{V_LANE}')
    A(f'v_xor_b32 v{V_T + 2}, v{V_T + 2}, v{V_T + 1}')
    A(f'v_lshl_add_u32 v{V_T}, v{V_T + 2}, 4, v{V_T}')
    A(f'v_add_u32 v{V_RA}, s43, v{V_T}')
    A(f'v_xor_b32 v{V_RA + 1}, 64, v{V_RA}')
    A(f'v_bfe_u32 v{V_T + 2}, v{V_LANE}, 2, 2')
    A(f'v_lshl_add_u32 v{V_T + 2}, v{V_T + 1}, 3, v{V_T + 2}')
    A(f'v_mul_u32_u24 v{V_T + 2}, 160, v{V_T + 2}')
    A(f'v_bfe_u32 v{V_T + 3}, v{V_LANE}, 1, 1')
    A(f'v_bfe_u32 v{V_T + 4}, v{V_LANE}, 4, 1')
    A(f'v_lshl_add_u32 v{V_T + 3}, v{V_T + 4}, 1, v{V_T + 3}')
    A(f'v_lshl_add_u32 v{V_T + 2}, v{V_T + 3}, 4, v{V_T + 2}')
    A(f'v_and_b32 v{V_T + 3}, 1, v{V_LANE}')
    A(f'v_lshl_add_u32 v{V_T + 2}, v{V_T + 3}, 3, v{V_T + 2}')
    A(f's_add_u32 s44, s43, {BOFF}')
    A(f'v_add_u32 v{V_RA + 2}, s44, v{V_T + 2}')
    A(f'v_mul_u32_u24 v{V_T + 3}, 160, v{V_T + 4}')
    A(f'v_add_u32 v{V_RA + 3}, 128, v{V_RA + 2}')
    A(f'v_sub_u32 v{V_RA + 3}, v{V_RA + 3}, v{V_T + 3}')
    for j in range(4):
        A(f'v_add_u32 v{V_RA + 4 + j}, {2 * SLOT}, v{V_RA + j}')
    A(f'v_and_b32 v{V_T}, 15, v{V_LANE}')
    A(f'v_add_u32 v{V_T}, s42, v{V_T}')
    A('s_movk_i32 s44, 1280')
    A(f'v_mul_lo_u32 v{V_X}, v{V_T}, s44')
    A(f'v_lshl_add_u32 v{V_X}, v{V_T + 1}, 3, v{V_X}')
    A(f'v_add_u32 v{V_X}, s45, v{V_X}')
    A('s_lshl_b32 s46, s35, 12'); A('s_add_u32 s46, s46, s43')
    A('s_mul_i32 s47, s35, 5120'); A('s_add_u32 s47, s47, s43'); A(f's_add_u32 s47, s47, {BOFF}')

    def issue(t):
        slot = (t % 4) * SLOT
        early = t < 10
        va = V_AE if early else V_AH
        A(f's_add_u32 s48, {"s37" if early else "s38"}, {128 * t}')
        for ii in range(4):
            A(f's_add_u32 m0, s46, {slot + ii * 1024}')
            A(f'buffer_load_dwordx4 v{va}, s[16:19], s48 offen lds')
            if ii < 3:
                if early:
                    A('s_add_u32 s48, s48, s41')
                else:
                    A(f's_add_u32 s48, s48, {8 * 3456}')
        A(f's_add_u32 s48, {"s39" if early else "s40"}, {81920 * t}')
        srd = 's[28:31]' if early else 's[20:23]'
        for ii in range(5):
            A(f's_add_u32 m0, s47, {slot + ii * 1024}')
            A(f'buffer_load_dwordx4 v{V_BD + ii}, {srd}, s48 offen lds')

    def compute(t):
        s = t % 4
        ra = V_RA + (4 if s >= 2 else 0)
        so = (s % 2) * SLOT
        acc = ACC1 if t < 10 else ACC2
        first = t in (0, 10)
        for ks in range(2):
            for rt in range(2):
                f = AF + 8 * ks + 4 * rt
                A(f'ds_read_b128 v[{f}:{f + 3}], v{ra + ks} offset:{so + rt * 2048}')
            for nt in range(5):
                f = BF + 20 * ks + 4 * nt
                if nt < 4:
                    A(f'ds_read_b64_tr_b16 v[{f}:{f + 1}], v{ra + 2} offset:{so + ks * 5120 + 32 * nt}')
                    A(f'ds_read_b64_tr_b16 v[{f + 2}:{f + 3}], v{ra + 2} offset:{so + ks * 5120 + 640 + 32 * nt}')
                else:
                    A(f'ds_read_b64_tr_b16 v[{f}:{f + 1}], v{ra + 3} offset:{so + ks * 5120}')
                    A(f'ds_read_b64_tr_b16 v[{f + 2}:{f + 3}], v{ra + 3} offset:{so + ks * 5120 + 640}')
        for ks in range(2):
            for nt in range(5):
                done = 12 * ks + 2 + 2 * (nt + 1)
                A(f's_waitcnt lgkmcnt({min(15, 24 - done)})')
                for rt in range(2):
                    d = acc + 4 * (5 * rt + nt)
                    fa = AF + 8 * ks + 4 * rt
                    fb = BF + 20 * ks + 4 * nt
                    c = '0' if (first and ks == 0) else f'v[{d}:{d + 3}]'
                    A(f'v_mfma_f32_16x16x32_bf16 v[{d}:{d + 3}], v[{fb}:{fb + 3}], v[{fa}:{fa + 3}], {c}')

    stamp_init(A)
    stamp(A)
    for t in range(3):
        issue(t)
    for t in range(NST):
        rem = min(2, NST - 1 - t)
        stamp(A)
        A(f's_waitcnt vmcnt({9 * rem})')
        A('s_barrier')
        stamp(A)
        if t + 3 < NST:
            issue(t + 3)
        if t == NST - 1:
            A('s_movk_i32 s49, 20480')
            for rt in range(2):
                for nt in range(5):
                    r = XR + 2 * (5 * rt + nt)
                    A(f'buffer_load_dwordx2 v[{r}:{r + 1}], v{V_X}, s[12:15], {"s49" if rt else "0"} offen offset:{nt * 32}')
            A('s_cmp_eq_u32 s36, 1')
            A(f's_cbranch_scc1 {name}_skip_last')
        compute(t)
    A.flush()
    A.label(f'{name}_skip_last')
    A('s_barrier')
    A(f'v_lshlrev_b32 v{V_T}, 4, v{V_LANE}')
    A('s_mul_i32 s44, s35, 10240')
    A(f'v_add_u32 v{V_T}, s44, v{V_T}')
    A('s_cmp_eq_u32 s36, 0')
    A(f's_cbranch_scc1 {name}_half0')
    for j in range(40):
        A(f'v_add_f32 v{ACC2 + j}, v{ACC1 + j}, v{ACC2 + j}')
    for tl in range(10):
        A(f'ds_write_b128 v{V_T}, v[{ACC2 + 4 * tl}:{ACC2 + 4 * tl + 3}] offset:{tl * 1024}')
    A('s_waitcnt lgkmcnt(0)')
    A('s_barrier')
    stamp_dump(A)
    A('s_endpgm')
    A.label(f'{name}_half0')
    A('s_barrier')
    for tl in range(10):
        A(f'ds_read_b128 v[{RED + 4 * tl}:{RED + 4 * tl + 3}], v{V_T} offset:{tl * 1024}')
    A('s_waitcnt vmcnt(0) lgkmcnt(0)')
    A(f's_mov_b32 s44, {NLOG2E}')
    A('s_mov_b32 s45, 0xffff0000')
    for tl in range(10):
        rt, nt = tl // 5, tl % 5
        xr = XR + 2 * tl
        xs = V_T + 8
        A(f'v_lshlrev_b32 v{xs}, 16, v{xr}')
        A(f'v_and_b32 v{xs + 1}, s45, v{xr}')
        A(f'v_lshlrev_b32 v{xs + 2}, 16, v{xr + 1}')
        A(f'v_and_b32 v{xs + 3}, s45, v{xr + 1}')
        for i in range(4):
            y = ACC2 + 4 * tl + i
            s_ = ACC1 + 4 * tl + i
            t = V_T + 1 + i
            A(f'v_add_f32 v{y}, v{y}, v{RED + 4 * tl + i}')
            A(f'v_mul_f32 v{t}, s44, v{y}')
            A(f'v_exp_f32 v{t}, v{t}')
            A(f'v_add_f32 v{t}, 1.0, v{t}')
            A(f'v_rcp_f32 v{t}, v{t}')
            A(f'v_mul_f32 v{t}, v{t}, v{y}')
            A(f'v_fma_f32 v{xs + i}, v{s_}, v{t}, v{xs + i}')
        A(f'v_cvt_pk_bf16_f32 v{xr}, v{xs}, v{xs + 1}')
        A(f'v_cvt_pk_bf16_f32 v{xr + 1}, v{xs + 2}, v{xs + 3}')
        A(f'buffer_store_dwordx2 v[{xr}:{xr + 1}], v{V_X}, s[24:27], {"s49" if rt else "0"} offen offset:{nt * 32}')
    stamp_dump(A)
    A.label(f'{name}_end')
    A('s_endpgm')
```

```python
from asmlib import Asm
from layout import *

SLOT = 36864
HALF = 18432
BOFF = 8192
K2_LDS = 4 * SLOT
NLOG2E = 0xbfb8aa3b
NST = 19
import os
STAMP = 'stamp' in os.environ.get('K2FLAGS', '').split(',')
STAMP_LDS = K2_LDS
if STAMP:
    K2_LDS += 2048
STAMP_OFF = 16 << 20


def stamp(A):
    if not STAMP:
        return
    A('s_memtime s[60:61]')
    A('s_waitcnt lgkmcnt(0)')
    A('v_mov_b32 v236, s60')
    A('v_mov_b32 v237, s61')
    A('ds_write_b64 v238, v[236:237]')
    A('v_add_u32 v238, 8, v238')
    A('s_waitcnt lgkmcnt(0)')


def stamp_init(A):
    if not STAMP:
        return
    A('s_lshl_b32 s62, s34, 9')
    A(f's_add_u32 s62, s62, {STAMP_LDS}')
    A('v_mov_b32 v238, s62')
    A('v_mov_b32 v236, 0')
    A('v_mov_b32 v237, 0')
    A('v_lshl_add_u32 v239, v1, 3, v238')
    A('ds_write_b64 v239, v[236:237]')
    A('s_waitcnt lgkmcnt(0)')


def stamp_dump(A):
    if not STAMP:
        return
    stamp(A)
    A('ds_read_b64 v[236:237], v239')
    A('s_lshl_b32 s62, s2, 2')
    A('s_add_u32 s62, s62, s34')
    A('s_lshl_b32 s62, s62, 9')
    A(f's_add_u32 s62, s62, {STAMP_OFF}')
    A('v_lshlrev_b32 v239, 3, v1')
    A('s_waitcnt lgkmcnt(0)')
    A('buffer_store_dwordx2 v[236:237], v239, s[16:19], s62 offen')

V_LANE = 1
V_AE, V_AH = 2, 3
V_BD = 4
V_RA = 10
V_X = 18
V_T = 20
FS = 40
ACC1 = 88
ACC2 = 108
XR = 128
K2_VGPR = 240 if STAMP else 144


def gen_k2(A, name):
    A.raw(f'.globl {name}')
    A.raw('.p2align 8')
    A.raw(f'.type {name},@function')
    A.label(name)
    A('s_cmp_ge_u32 s2, 256')
    A(f's_cbranch_scc1 {name}_end')
    A('s_load_dwordx2 s[4:5], s[0:1], 0')
    A('s_load_dwordx4 s[8:11], s[0:1], 48')
    A('s_load_dwordx2 s[6:7], s[0:1], 72')
    A('s_and_b32 s42, s2, 7')
    A('s_lshr_b32 s43, s2, 3')
    A('s_and_b32 s32, s43, 7')
    A('s_lshr_b32 s43, s43, 3')
    A('s_lshl_b32 s33, s42, 2')
    A('s_add_u32 s33, s33, s43')
    A(f'v_and_b32 v{V_LANE}, 63, v0')
    A(f'v_lshrrev_b32 v{V_T}, 6, v0')
    A(f'v_readfirstlane_b32 s34, v{V_T}')
    A('s_waitcnt lgkmcnt(0)')
    A('s_and_b32 s35, s34, 1')
    A('s_lshr_b32 s36, s34, 1')
    A('s_mov_b32 s12, s4'); A('s_and_b32 s13, s5, 0xffff'); A(f's_mov_b32 s14, {2048 * 1280}'); A('s_mov_b32 s15, 0x20000')
    A('s_mov_b32 s16, s6'); A('s_and_b32 s17, s7, 0xffff'); A(f's_mov_b32 s18, {(32 << 20) if STAMP else WS_END}'); A('s_mov_b32 s19, 0x20000')
    A('s_mov_b32 s20, s8'); A('s_and_b32 s21, s9, 0xffff'); A(f's_mov_b32 s22, {1728 * 1280}'); A('s_mov_b32 s23, 0x20000')
    A('s_mov_b32 s24, s10'); A('s_and_b32 s25, s11, 0xffff'); A(f's_mov_b32 s26, {2048 * 1280}'); A('s_mov_b32 s27, 0x20000')
    A('s_lshl_b32 s43, s36, 7')
    A(f's_add_u32 s37, s43, {OFF_AP}')
    A(f's_add_u32 s38, s43, {OFF_H - 1280}')
    A('s_mul_i32 s43, s36, 81920')
    A(f's_add_u32 s39, s43, {OFF_WP}')
    A(f's_sub_u32 s40, s43, {819200}')
    A('s_lshl_b32 s42, s33, 6'); A('s_lshl_b32 s43, s35, 5'); A('s_add_u32 s43, s42, s43')
    A(f'v_lshrrev_b32 v{V_T}, 3, v{V_LANE}')
    A(f'v_and_b32 v{V_T + 1}, 7, v{V_LANE}')
    A(f'v_xor_b32 v{V_T + 1}, v{V_T + 1}, v{V_T}')
    A(f'v_lshlrev_b32 v{V_T + 1}, 4, v{V_T + 1}')
    A(f'v_add_u32 v{V_T}, s43, v{V_T}')
    A('s_movk_i32 s43, 1280')
    A(f'v_mul_lo_u32 v{V_AE}, v{V_T}, s43')
    A('s_movk_i32 s43, 3456')
    A(f'v_mul_lo_u32 v{V_AH}, v{V_T}, s43')
    A(f'v_add_u32 v{V_AE}, v{V_AE}, v{V_T + 1}')
    A(f'v_add_u32 v{V_AH}, v{V_AH}, v{V_T + 1}')
    A('s_mul_i32 s43, s35, 320')
    A('s_movk_i32 s44, 6554')
    A('s_mul_i32 s45, s32, 160')
    for ii in range(5):
        t = V_T
        A(f'v_add_u32 v{t}, s43, v{V_LANE}')
        A(f'v_add_u32 v{t}, {64 * ii}, v{t}')
        A(f'v_mul_lo_u32 v{t + 1}, v{t}, s44')
        A(f'v_lshrrev_b32 v{t + 1}, 16, v{t + 1}')
        A(f'v_mul_u32_u24 v{t + 2}, 10, v{t + 1}')
        A(f'v_sub_u32 v{t + 2}, v{t}, v{t + 2}')
        A(f'v_bfe_u32 v{t + 3}, v{t + 1}, 3, 1')
        A(f'v_lshlrev_b32 v{t + 3}, 1, v{t + 3}')
        A(f'v_sub_u32 v{t + 2}, v{t + 2}, v{t + 3}')
        A(f'v_add_u32 v{t + 3}, 10, v{t + 2}')
        A(f'v_cmp_gt_i32 vcc, 0, v{t + 2}')
        A(f'v_cndmask_b32 v{t + 2}, v{t + 2}, v{t + 3}, vcc')
        A(f'v_lshlrev_b32 v{t + 2}, 4, v{t + 2}')
        A(f'v_mul_u32_u24 v{t + 1}, 1280, v{t + 1}')
        A(f'v_add_u32 v{t + 1}, v{t + 1}, v{t + 2}')
        A(f'v_add_u32 v{V_BD + ii}, s45, v{t + 1}')
    A(f's_mul_i32 s43, s36, {HALF}')
    A('s_lshl_b32 s46, s35, 12'); A('s_add_u32 s46, s46, s43')
    A('s_mul_i32 s47, s35, 5120'); A('s_add_u32 s47, s47, s43'); A(f's_add_u32 s47, s47, {BOFF}')

    def issue_ops(t):
        slot = (t % 4) * SLOT
        early = t < 5
        va = V_AE if early else V_AH
        ops = []
        for ii in range(4):
            g = []
            if ii == 0:
                g.append(f's_add_u32 s48, {"s37" if early else "s38"}, {256 * t}')
            else:
                g.append(f's_add_u32 s48, s48, {8 * (1280 if early else 3456)}')
            g.append(f's_add_u32 m0, s46, {slot + ii * 1024}')
            g.append(f'buffer_load_dwordx4 v{va}, s[16:19], s48 offen lds')
            ops.append(g)
        srd = 's[16:19]' if early else 's[20:23]'
        for ii in range(5):
            g = []
            if ii == 0:
                g.append(f's_add_u32 s49, {"s39" if early else "s40"}, {163840 * t}')
            g.append(f's_add_u32 m0, s47, {slot + ii * 1024}')
            g.append(f'buffer_load_dwordx4 v{V_BD + ii}, {srd}, s49 offen lds')
            ops.append(g)
        return ops

    def issue(t):
        for g in issue_ops(t):
            for i in g:
                A(i)
    stamp_init(A)
    stamp(A)
    for t in range(3):
        issue(t)
    A(f'v_and_b32 v{V_T}, 15, v{V_LANE}')
    A('s_lshl_b32 s44, s34, 4')
    A(f'v_add_u32 v{V_T}, s44, v{V_T}')
    A(f'v_lshlrev_b32 v{V_T}, 7, v{V_T}')
    A(f'v_lshrrev_b32 v{V_T + 1}, 4, v{V_LANE}')
    A(f'v_and_b32 v{V_T + 2}, 7, v{V_LANE}')
    A(f'v_xor_b32 v{V_T + 2}, v{V_T + 2}, v{V_T + 1}')
    A(f'v_lshl_add_u32 v{V_RA}, v{V_T + 2}, 4, v{V_T}')
    A(f'v_xor_b32 v{V_RA + 1}, 64, v{V_RA}')
    A(f'v_bfe_u32 v{V_T + 2}, v{V_LANE}, 2, 2')
    A(f'v_lshl_add_u32 v{V_T + 2}, v{V_T + 1}, 3, v{V_T + 2}')
    A(f'v_mul_u32_u24 v{V_T + 2}, 160, v{V_T + 2}')
    A(f'v_bfe_u32 v{V_T + 3}, v{V_LANE}, 1, 1')
    A(f'v_bfe_u32 v{V_T + 4}, v{V_LANE}, 4, 1')
    A(f'v_lshl_add_u32 v{V_T + 3}, v{V_T + 4}, 1, v{V_T + 3}')
    A(f'v_lshl_add_u32 v{V_T + 2}, v{V_T + 3}, 4, v{V_T + 2}')
    A(f'v_and_b32 v{V_T + 3}, 1, v{V_LANE}')
    A(f'v_lshl_add_u32 v{V_T + 2}, v{V_T + 3}, 3, v{V_T + 2}')
    A(f'v_add_u32 v{V_RA + 2}, {BOFF}, v{V_T + 2}')
    A(f'v_mul_u32_u24 v{V_T + 3}, 160, v{V_T + 4}')
    A(f'v_add_u32 v{V_RA + 3}, 128, v{V_RA + 2}')
    A(f'v_sub_u32 v{V_RA + 3}, v{V_RA + 3}, v{V_T + 3}')
    for j in range(4):
        A(f'v_add_u32 v{V_RA + 4 + j}, {2 * SLOT}, v{V_RA + j}')
    A(f'v_and_b32 v{V_T}, 15, v{V_LANE}')
    A('s_add_u32 s44, s44, s42')
    A(f'v_add_u32 v{V_T}, s44, v{V_T}')
    A('s_movk_i32 s44, 1280')
    A(f'v_mul_lo_u32 v{V_X}, v{V_T}, s44')
    A(f'v_lshl_add_u32 v{V_X}, v{V_T + 1}, 3, v{V_X}')
    A(f'v_add_u32 v{V_X}, s45, v{V_X}')

    def reads(t, gi):
        s = t % 4
        ra = V_RA + (4 if s >= 2 else 0)
        kk, ks = gi >> 1, gi & 1
        so = (s % 2) * SLOT + kk * HALF
        f0 = FS + 24 * (gi % 2)
        A(f'ds_read_b128 v[{f0}:{f0 + 3}], v{ra + ks} offset:{so}')
        for nt in range(5):
            f = f0 + 4 + 4 * nt
            if nt < 4:
                A(f'ds_read_b64_tr_b16 v[{f}:{f + 1}], v{ra + 2} offset:{so + ks * 5120 + 32 * nt}')
                A(f'ds_read_b64_tr_b16 v[{f + 2}:{f + 3}], v{ra + 2} offset:{so + ks * 5120 + 640 + 32 * nt}')
            else:
                A(f'ds_read_b64_tr_b16 v[{f}:{f + 1}], v{ra + 3} offset:{so + ks * 5120}')
                A(f'ds_read_b64_tr_b16 v[{f + 2}:{f + 3}], v{ra + 3} offset:{so + ks * 5120 + 640}')

    def mfmas(t, gi, more, dma):
        acc = ACC1 if t < 5 else ACC2
        first = (t in (0, 5)) and gi == 0
        f0 = FS + 24 * (gi % 2)
        for nt in range(5):
            left = (11 if more else 0) + 2 * (4 - nt)
            A(f's_waitcnt lgkmcnt({min(15, left)})')
            d = acc + 4 * nt
            fb = f0 + 4 + 4 * nt
            c = '0' if first else f'v[{d}:{d + 3}]'
            A(f'v_mfma_f32_16x16x32_bf16 v[{d}:{d + 3}], v[{fb}:{fb + 3}], v[{f0}:{f0 + 3}], {c}')
            if dma:
                for i in dma.pop(0):
                    A(i)

    for t in range(NST):
        rem = min(2, NST - 1 - t)
        ng = 4 if t < NST - 1 else 2
        stamp(A)
        if t == NST - 1:
            A('s_waitcnt vmcnt(0)')
        elif t == NST - 2:
            A('s_waitcnt vmcnt(0)')
        elif t == NST - 3:
            A('s_waitcnt vmcnt(9)')
        else:
            A(f's_waitcnt vmcnt({9 * rem})')
        A('s_barrier')
        stamp(A)
        reads(t, 0)
        dma = []
        if t + 3 < NST - 1:
            dma = issue_ops(t + 3)
        elif t + 3 == NST - 1:
            A('s_cmp_eq_u32 s36, 1')
            A(f's_cbranch_scc1 {name}_noload')
            issue(t + 3)
            A.label(f'{name}_noload')
        if dma:
            for i in dma.pop(0):
                A(i)
            for i in dma.pop(0):
                A(i)
        if t == NST - 1:
            for nt in range(5):
                r = XR + 2 * nt
                A(f'buffer_load_dwordx2 v[{r}:{r + 1}], v{V_X}, s[12:15], 0 offen offset:{nt * 32}')
        for gi in range(ng):
            more = gi + 1 < ng
            if more:
                reads(t, gi + 1)
            mfmas(t, gi, more, dma if gi >= 1 else None)
        assert not dma
    A('s_waitcnt vmcnt(0)')
    A(f's_mov_b32 s44, {NLOG2E}')
    A('s_mov_b32 s45, 0xffff0000')
    for nt in range(5):
        xr = XR + 2 * nt
        xs = V_T + 8
        A(f'v_lshlrev_b32 v{xs}, 16, v{xr}')
        A(f'v_and_b32 v{xs + 1}, s45, v{xr}')
        A(f'v_lshlrev_b32 v{xs + 2}, 16, v{xr + 1}')
        A(f'v_and_b32 v{xs + 3}, s45, v{xr + 1}')
        for i in range(4):
            A(f'v_mul_f32 v{V_T + 1 + i}, s44, v{ACC2 + 4 * nt + i}')
        for i in range(4):
            A(f'v_exp_f32 v{V_T + 1 + i}, v{V_T + 1 + i}')
        for i in range(4):
            A(f'v_add_f32 v{V_T + 1 + i}, 1.0, v{V_T + 1 + i}')
        for i in range(4):
            A(f'v_rcp_f32 v{V_T + 1 + i}, v{V_T + 1 + i}')
        for i in range(4):
            A(f'v_mul_f32 v{V_T + 1 + i}, v{V_T + 1 + i}, v{ACC2 + 4 * nt + i}')
        for i in range(4):
            A(f'v_fma_f32 v{xs + i}, v{ACC1 + 4 * nt + i}, v{V_T + 1 + i}, v{xs + i}')
        A(f'v_cvt_pk_bf16_f32 v{xr}, v{xs}, v{xs + 1}')
        A(f'v_cvt_pk_bf16_f32 v{xr + 1}, v{xs + 2}, v{xs + 3}')
        A(f'buffer_store_dwordx2 v[{xr}:{xr + 1}], v{V_X}, s[24:27], 0 offen offset:{nt * 32}')
    stamp_dump(A)
    A.label(f'{name}_end')
    A('s_endpgm')
```

```python
from asmlib import Asm
from layout import *
import os
FL = os.environ.get('K1FLAGS', '').split(',')

LOG2E = 0x3fb8aa3b
NLOG2E = 0xbfb8aa3b
EPS6 = 0x358637bd
EPS5 = 0x3727c5ac
CHUNK = 40960
EXB = 3 * CHUNK
K1_LDS = EXB + 2 * 16384
STAMP = 'stamp' in FL
STAMP_LDS = K1_LDS
if STAMP:
    K1_LDS += 2048
STAMP_OFF = 16 << 20

V_LANE, V_L31, V_HF = 1, 2, 3
V_DMA, V_LRD, V_RD, V_OUT = 4, 5, 6, 7
V_XR = 8
V_XD = 12
VKV = 8
V_EXW = 13
V_SP, V_SL = 14, 15
ACC_A, ACC_C = 16, 32
SS = 48
FR = 64
TMP = 80
XF = 96
K1_VGPR = 256
K1_AGPR = 96


def stamp(A):
    if not STAMP:
        return
    A('s_memtime s[60:61]')
    A('s_waitcnt lgkmcnt(0)')
    A('v_accvgpr_write_b32 a80, s60')
    A('v_accvgpr_write_b32 a81, s61')
    A('s_nop 1')
    A(f'ds_write_b64 v{V_SP}, a[80:81]')
    A(f'v_add_u32 v{V_SP}, 8, v{V_SP}')
    A('s_waitcnt lgkmcnt(0)')


def stamp_init(A):
    if not STAMP:
        return
    A('s_lshl_b32 s62, s34, 9')
    A(f's_add_u32 s62, s62, {STAMP_LDS}')
    A(f'v_mov_b32 v{V_SP}, s62')
    A('v_accvgpr_write_b32 a80, 0')
    A('v_accvgpr_write_b32 a81, 0')
    A(f'v_lshl_add_u32 v{V_SL}, v{V_LANE}, 3, v{V_SP}')
    A('s_nop 1')
    A(f'ds_write_b64 v{V_SL}, a[80:81]')
    A('s_waitcnt lgkmcnt(0)')


def stamp_dump(A):
    if not STAMP:
        return
    stamp(A)
    A(f'ds_read_b64 a[80:81], v{V_SL}')
    A('s_lshl_b32 s62, s2, 2')
    A('s_add_u32 s62, s62, s34')
    A('s_lshl_b32 s62, s62, 9')
    A(f's_add_u32 s62, s62, {STAMP_OFF}')
    A(f'v_lshlrev_b32 v{V_SL}, 3, v{V_LANE}')
    A('s_waitcnt lgkmcnt(0)')
    A(f'buffer_store_dwordx2 a[80:81], v{V_SL}, s[28:31], s62 offen')


def dma_ops(srd, scol):
    ops = []
    for t in range(10):
        g = []
        if t == 0:
            g.append(f's_mov_b32 s42, {scol}')
        else:
            g.append('s_add_u32 s42, s42, s38')
        g.append(f's_add_u32 m0, s40, {t * 4096}')
        g.append(f'buffer_load_dwordx4 v{V_DMA}, {srd}, s42 offen lds')
        ops.append(g)
    return ops


def advance_bufs(A):
    A(f's_add_u32 s39, s39, {CHUNK}')
    A(f's_cmp_ge_u32 s39, {3 * CHUNK}')
    A(f's_cselect_b32 s39, 0, s39')
    A(f's_add_u32 s45, s45, {CHUNK}')
    A(f's_cmp_ge_u32 s45, {3 * CHUNK}')
    A(f's_cselect_b32 s45, 0, s45')
    A(f's_add_u32 s40, s45, s46')


def mfma_chunk(A, acc, transposed, fillers=(), dma=None, PF=3):
    A(f'v_add_u32 v{V_RD}, s39, v{V_LRD}')
    fillers = list(fillers)
    nf = len(fillers)
    NG = 33

    def rd(s):
        f = FR + 4 * (s % 4)
        A(f'ds_read_b64_tr_b16 v[{f}:{f + 1}], v{V_RD} offset:{s * 1024}')
        A(f'ds_read_b64_tr_b16 v[{f + 2}:{f + 3}], v{V_RD} offset:{s * 1024 + 256}')
    for s in range(PF):
        rd(s)
    done = 0
    for s in range(40):
        if s + PF < 40:
            rd(s + PF)
        A(f's_waitcnt lgkmcnt({2 * min(PF, 39 - s)})')
        f = FR + 4 * (s % 4)
        c = '0' if s == 0 else f'v[{acc}:{acc + 15}]'
        x = XF + 4 * s
        if transposed:
            A(f'v_mfma_f32_32x32x16_bf16 v[{acc}:{acc + 15}], v[{f}:{f + 3}], v[{x}:{x + 3}], {c}')
        else:
            A(f'v_mfma_f32_32x32x16_bf16 v[{acc}:{acc + 15}], v[{x}:{x + 3}], v[{f}:{f + 3}], {c}')
        if dma is not None and s % 4 == 1:
            for i in dma[s // 4]:
                A(i)
        if 1 <= s <= NG:
            want = (nf * s + NG - 1) // NG
            while done < want:
                A(fillers[done])
                done += 1
    assert done == nf


def phi_ops(dst, src, t1):
    return [f'v_mul_f32 v{t1}, s43, v{src}',
            f'v_min_f32 v{t1}, 0, v{t1}',
            f'v_exp_f32 v{t1}, v{t1}',
            f'v_max_f32 v{dst}, 0, v{src}',
            f'v_add_f32 v{dst}, v{dst}, v{t1}',
            f'v_add_f32 v{dst}, s44, v{dst}']


def store_rows_ops(vals, soff, inst_off):
    P = TMP + 8
    ops = []
    for j in range(8):
        ops.append(f'v_cvt_pk_bf16_f32 v{P + j}, v{vals + 2 * j}, v{vals + 2 * j + 1}')
    for pr in range(2):
        a, b = P + 4 * pr, P + 4 * pr + 2
        ops.append(f'v_permlane32_swap_b32 v{a}, v{b}')
        ops.append(f'v_permlane32_swap_b32 v{a + 1}, v{b + 1}')
    for pr in range(2):
        ops.append(f'buffer_store_dwordx4 v[{P + 4 * pr}:{P + 4 * pr + 3}], v{V_OUT}, s[28:31], {soff} offen offset:{inst_off + 32 * pr}')
    return ops


def head(A, nwait):
    stamp(A)
    A(f's_waitcnt vmcnt({nwait})')
    A('s_barrier')
    stamp(A)


def gen_k1(A, name):
    A.raw(f'.globl {name}')
    A.raw('.p2align 8')
    A.raw(f'.type {name},@function')
    A.label(name)
    A('s_cmp_ge_u32 s2, 256')
    A(f's_cbranch_scc1 {name}_end')
    A('s_load_dwordx4 s[4:7], s[0:1], 0')
    A('s_load_dwordx4 s[8:11], s[0:1], 32')
    A('s_load_dwordx2 s[12:13], s[0:1], 72')
    A('s_and_b32 s42, s2, 7')
    A('s_lshr_b32 s43, s2, 3')
    A('s_and_b32 s32, s43, 15')
    A('s_lshr_b32 s43, s43, 4')
    A('s_lshl_b32 s33, s42, 1')
    A('s_add_u32 s33, s33, s43')
    A(f'v_and_b32 v{V_LANE}, 63, v0')
    A(f'v_lshrrev_b32 v{TMP}, 6, v0')
    A(f'v_and_b32 v{V_L31}, 31, v0')
    A(f'v_readfirstlane_b32 s34, v{TMP}')
    A(f'v_lshrrev_b32 v{V_HF}, 5, v{V_LANE}')
    A(f'v_lshrrev_b32 v{TMP}, 3, v{V_LANE}')
    A(f'v_mul_u32_u24 v{TMP}, 1280, v{TMP}')
    A(f'v_lshrrev_b32 v{TMP + 1}, 4, v{V_LANE}')
    A(f'v_and_b32 v{TMP + 2}, 7, v{V_LANE}')
    A(f'v_xor_b32 v{TMP + 2}, v{TMP + 2}, v{TMP + 1}')
    A(f'v_lshl_add_u32 v{V_XD}, v{TMP + 2}, 4, v{TMP}')
    A(f'v_xor_b32 v{V_XD + 1}, 64, v{V_XD}')
    A('s_waitcnt lgkmcnt(0)')
    A('s_mov_b32 s16, s4'); A('s_and_b32 s17, s5, 0xffff'); A(f's_mov_b32 s18, {2048 * 1280}'); A('s_mov_b32 s19, 0x20000')
    A('s_lshl_b32 s42, s32, 7'); A('s_lshl_b32 s43, s34, 5'); A('s_add_u32 s49, s42, s43')
    A('s_mul_i32 s50, s49, 1280')
    A('s_mul_i32 s51, s34, 20480'); A(f's_add_u32 s51, s51, {CHUNK}')

    def x_round(rho):
        for j in range(5):
            for o in range(4):
                A(f's_add_u32 m0, s51, {j * 4096 + o * 1024}')
                A(f's_add_u32 s42, s50, {o * 10240 + (5 * rho + j) * 128}')
                A(f'buffer_load_dwordx4 v{V_XD + (o & 1)}, s[16:19], s42 offen lds')
    x_round(0)
    A('s_mov_b32 s28, s12'); A('s_and_b32 s29, s13, 0xffff'); A(f's_mov_b32 s30, {(32 << 20) if STAMP else WS_END}'); A('s_mov_b32 s31, 0x20000')
    A('s_and_b32 s7, s7, 0xffff'); A('s_and_b32 s9, s9, 0xffff'); A('s_and_b32 s11, s11, 0xffff')
    A('s_cmp_lt_u32 s33, 6')
    A('s_cselect_b32 s20, s6, s8'); A('s_cselect_b32 s21, s7, s9')
    A('s_cselect_b32 s24, s6, s10'); A('s_cselect_b32 s25, s7, s11')
    A(f's_mov_b32 s22, {640 * 3456}'); A(f's_cselect_b32 s22, {640 * 3840}, s22')
    A('s_mov_b32 s26, s22')
    A('s_mov_b32 s23, 0x20000'); A('s_mov_b32 s27, 0x20000')
    A('s_mov_b32 s47, 3456'); A('s_cselect_b32 s47, 3840, s47')
    A('s_lshl_b32 s38, s47, 6')
    A('s_mul_i32 s35, s33, 640'); A('s_mov_b32 s36, 64'); A('s_mov_b32 s37, 128'); A('s_mov_b32 s41, 5')
    A('s_cmp_lt_u32 s33, 2')
    A(f's_cbranch_scc1 {name}_cols_done')
    A('s_sub_u32 s42, s33, 2'); A('s_mul_i32 s35, s42, 320'); A('s_add_u32 s35, s35, 1280')
    A('s_mov_b32 s36, 1280'); A('s_mov_b32 s37, 64')
    A('s_cmp_lt_u32 s33, 6')
    A(f's_cbranch_scc1 {name}_cols_done')
    A('s_sub_u32 s42, s33, 6')
    A('s_mul_i32 s35, s42, 6'); A('s_mul_i32 s43, s42, 5'); A('s_add_u32 s43, s43, 4')
    A('s_cmp_lt_u32 s42, 4')
    A('s_cselect_b32 s35, s35, s43'); A('s_cselect_b32 s41, 6, 5')
    A('s_lshl_b32 s35, s35, 6')
    A('s_mov_b32 s36, 0'); A('s_mov_b32 s37, 64')
    A.label(f'{name}_cols_done')
    stamp_init(A)
    stamp(A)
    A(f'v_lshrrev_b32 v{TMP + 2}, 2, v{V_LANE}')
    A('s_lshl_b32 s43, s34, 4')
    A(f'v_add_u32 v{TMP + 2}, s43, v{TMP + 2}')
    A(f'v_mul_lo_u32 v{V_DMA}, v{TMP + 2}, s47')
    A(f'v_and_b32 v{TMP + 2}, 3, v{V_LANE}')
    A(f'v_lshl_add_u32 v{V_DMA}, v{TMP + 2}, 4, v{V_DMA}')
    A('s_lshl_b32 s46, s34, 10')
    A('s_mov_b32 s40, s46')
    for g in dma_ops('s[20:23]', 's35'):
        for i in g:
            A(i)
    NPF = 0
    if 'pfw' in FL:
        NPF = 10
        A('s_lshl_b32 s48, s41, 2')
        A('s_sub_u32 s48, s48, 1')
        A(f'v_min_u32 v{TMP + 4}, s48, v{V_L31}')
        A(f'v_mul_lo_u32 v{TMP + 5}, v{V_HF}, s47')
        A(f'v_lshl_add_u32 v{TMP + 4}, v{TMP + 4}, 4, v{TMP + 5}')
        A('s_mul_i32 s48, s32, 40'); A('s_mul_i32 s42, s34, 10'); A('s_add_u32 s48, s48, s42')
        A('s_mul_i32 s48, s48, s47')
        A('s_add_u32 s48, s48, s35')
        A('s_cmp_lt_u32 s33, 2')
        A('s_cselect_b32 s42, 320, s36')
        A('s_add_u32 s42, s42, s48')
        A('s_lshl_b32 s52, s47, 1')
        for i in range(5):
            A(f'buffer_load_dwordx4 a[88:91], v{TMP + 4}, s[20:23], s48 offen')
            A(f'buffer_load_dwordx4 a[92:95], v{TMP + 4}, s[24:27], s42 offen')
            if i < 4:
                A('s_add_u32 s48, s48, s52')
                A('s_add_u32 s42, s42, s52')
    A(f'v_lshlrev_b32 v{V_LRD}, 3, v{TMP + 2}')
    A(f'v_bfe_u32 v{TMP + 3}, v{V_LANE}, 2, 2')
    A(f'v_lshl_add_u32 v{V_LRD}, v{TMP + 3}, 6, v{V_LRD}')
    A(f'v_bfe_u32 v{TMP + 3}, v{V_LANE}, 4, 1')
    A(f'v_lshl_add_u32 v{V_LRD}, v{TMP + 3}, 5, v{V_LRD}')
    A(f'v_lshl_add_u32 v{V_LRD}, v{V_HF}, 9, v{V_LRD}')
    A(f'v_add_u32 v{TMP}, s49, v{V_L31}')
    A('s_cmp_lt_u32 s33, 6')
    A('s_mov_b32 s43, 3456'); A('s_cselect_b32 s43, 1280, s43')
    A(f'v_mul_lo_u32 v{V_OUT}, v{TMP}, s43')
    A(f'v_lshl_add_u32 v{V_OUT}, v{V_HF}, 4, v{V_OUT}')
    A(f'v_bfe_u32 v{TMP + 1}, v{V_L31}, 1, 3')
    A(f'v_lshlrev_b32 v{TMP + 2}, 7, v{V_L31}')
    A(f'v_add_u32 v{TMP + 2}, s51, v{TMP + 2}')
    for q in range(4):
        A(f'v_add_u32 v{TMP + 3}, {2 * q}, v{V_HF}')
        A(f'v_xor_b32 v{TMP + 3}, v{TMP + 3}, v{TMP + 1}')
        A(f'v_lshl_add_u32 v{V_XR + q}, v{TMP + 3}, 4, v{TMP + 2}')
    A(f's_mov_b32 s43, {LOG2E}'); A(f's_mov_b32 s44, {EPS6}')
    ONES = TMP + 6
    A(f'v_mov_b32 v{ONES}, 0x3f803f80')
    acc = [TMP + 8 + i for i in range(8)]
    for a in acc:
        A(f'v_mov_b32 v{a}, 0')

    def x_read(rho):
        for s in range(20 * rho, 20 * rho + 20):
            A(f'ds_read_b128 v[{XF + 4 * s}:{XF + 4 * s + 3}], v{V_XR + (s & 3)} offset:{((s >> 2) % 5) * 4096}')

    def stats(rho):
        for d in range(80 * rho, 80 * rho + 80):
            A(f'v_dot2_f32_bf16 v{acc[d % 4]}, v{XF + d}, v{ONES}, v{acc[d % 4]}')
            A(f'v_dot2_f32_bf16 v{acc[4 + d % 4]}, v{XF + d}, v{XF + d}, v{acc[4 + d % 4]}')
    stamp(A)
    A(f's_waitcnt vmcnt({10 + NPF})')
    stamp(A)
    x_read(0)
    A('s_waitcnt lgkmcnt(0)')
    x_round(1)
    stats(0)
    stamp(A)
    A('s_waitcnt vmcnt(0)')
    stamp(A)
    x_read(1)
    A('s_waitcnt lgkmcnt(0)')
    A('s_barrier')
    A(f's_add_u32 s40, s46, {CHUNK}')
    A('s_add_u32 s48, s35, s36')
    for g in dma_ops('s[24:27]', 's48'):
        for i in g:
            A(i)
    A(f's_mov_b32 s45, {2 * CHUNK}')
    A('s_add_u32 s40, s45, s46')
    A('s_mov_b32 s39, 0')
    stats(1)
    A('s_nop 3')
    A(f'v_add_f32 v{acc[0]}, v{acc[0]}, v{acc[1]}'); A(f'v_add_f32 v{acc[2]}, v{acc[2]}, v{acc[3]}')
    A(f'v_add_f32 v{acc[4]}, v{acc[4]}, v{acc[5]}'); A(f'v_add_f32 v{acc[6]}, v{acc[6]}, v{acc[7]}')
    A(f'v_add_f32 v{acc[0]}, v{acc[0]}, v{acc[2]}'); A(f'v_add_f32 v{acc[4]}, v{acc[4]}, v{acc[6]}')
    A(f'v_mov_b32 v{acc[1]}, v{acc[0]}'); A(f'v_mov_b32 v{acc[5]}, v{acc[4]}')
    A(f'v_permlane32_swap_b32 v{acc[0]}, v{acc[1]}')
    A(f'v_permlane32_swap_b32 v{acc[4]}, v{acc[5]}')
    A(f'v_add_f32 v{acc[0]}, v{acc[0]}, v{acc[1]}')
    A(f'v_add_f32 v{acc[4]}, v{acc[4]}, v{acc[5]}')
    A(f's_mov_b32 s48, 0x3acccccd')
    A(f'v_mul_f32 v{acc[0]}, s48, v{acc[0]}')
    A(f'v_mul_f32 v{acc[4]}, s48, v{acc[4]}')
    A(f'v_fma_f32 v{acc[4]}, -v{acc[0]}, v{acc[0]}, v{acc[4]}')
    A(f'v_max_f32 v{acc[4]}, 0, v{acc[4]}')
    A(f'v_add_f32 v{acc[4]}, {EPS5}, v{acc[4]}')
    A(f'v_rsq_f32 v{acc[4]}, v{acc[4]}')
    A(f'v_mul_f32 v{acc[0]}, v{acc[0]}, v{acc[4]}')
    A(f'v_sub_f32 v{acc[0]}, 0, v{acc[0]}')
    A(f'v_mov_b32 v{acc[5]}, v{acc[4]}')
    A(f'v_mov_b32 v{acc[1]}, v{acc[0]}')
    assert acc[0] % 2 == 0 and acc[4] % 2 == 0
    A(f's_mov_b32 s48, 0xffff0000')
    for d in range(160):
        t = SS + 2 * (d % 8)
        A(f'v_lshlrev_b32 v{t}, 16, v{XF + d}')
        A(f'v_and_b32 v{t + 1}, s48, v{XF + d}')
        A(f'v_pk_fma_f32 v[{t}:{t + 1}], v[{t}:{t + 1}], v[{acc[4]}:{acc[5]}], v[{acc[0]}:{acc[1]}]')
        A(f'v_cvt_pk_bf16_f32 v{XF + d}, v{t}, v{t + 1}')
    stamp(A)
    A('s_cmp_lt_u32 s33, 2')
    A(f's_cbranch_scc1 {name}_q')
    A('s_cmp_lt_u32 s33, 6')
    A(f's_cbranch_scc1 {name}_kv')

    def sig_ops():
        ops = []
        for i in range(16):
            t = SS + i
            ops += [f'v_mul_f32 v{t}, s52, v{ACC_A + i}',
                    f'v_exp_f32 v{t}, v{t}',
                    f'v_add_f32 v{t}, 1.0, v{t}',
                    f'v_rcp_f32 v{t}, v{t}']
        out = []
        for b in range(0, 16, 4):
            for k in range(4):
                for i in range(b, b + 4):
                    out.append(ops[4 * i + k])
        return out

    def h_ops():
        ops = [f'v_mul_f32 v{ACC_C + i}, v{SS + i}, v{ACC_C + i}' for i in range(16)]
        return ops + store_rows_ops(ACC_C, 's53', 0)

    def gu_pair(first, prefetch):
        A('s_add_u32 s48, s35, s37')
        head(A, 10)
        mfma_chunk(A, ACC_A, True, [] if first else h_ops(), dma_ops('s[20:23]', 's48') if prefetch else None)
        advance_bufs(A)
        head(A, 10 if prefetch else 0)
        mfma_chunk(A, ACC_C, True, sig_ops(), dma_ops('s[24:27]', 's48') if prefetch else None)
        advance_bufs(A)
        A(f's_add_u32 s53, s35, {OFF_H}')
        A('s_mov_b32 s35, s48')
    A(f's_mov_b32 s52, {NLOG2E}')
    gu_pair(True, True)
    A('s_sub_u32 s41, s41, 2')
    A.flush()
    A.label(f'{name}_gu_loop')
    gu_pair(False, True)
    A('s_sub_u32 s41, s41, 1')
    A('s_cmp_lg_u32 s41, 0')
    A.flush()
    A(f's_cbranch_scc1 {name}_gu_loop')
    gu_pair(False, False)
    for i in h_ops():
        A(i)
    stamp_dump(A)
    A('s_endpgm')

    A.label(f'{name}_q')

    def q_ops(acc, soff, off):
        ops = []
        for i in range(16):
            ops += phi_ops(acc + i, acc + i, TMP + (i % 8))
        out = []
        for b in range(0, 16, 4):
            for k in range(6):
                for i in range(b, b + 4):
                    out.append(ops[6 * i + k])
        return out + store_rows_ops(acc, soff, off)

    def q_pair(first, prefetch):
        A('s_add_u32 s48, s35, s37')
        A('s_add_u32 s49, s48, s36')
        head(A, 10)
        mfma_chunk(A, ACC_A, True, [] if first else q_ops(ACC_C, 's53', 64), dma_ops('s[20:23]', 's48') if prefetch else None)
        advance_bufs(A)
        A(f's_add_u32 s53, s35, {OFF_PQ}')
        head(A, 10 if prefetch else 0)
        mfma_chunk(A, ACC_C, True, q_ops(ACC_A, 's53', 0), dma_ops('s[24:27]', 's49') if prefetch else None)
        advance_bufs(A)
        A('s_mov_b32 s35, s48')
    q_pair(True, True)
    A('s_sub_u32 s41, s41, 2')
    A.flush()
    A.label(f'{name}_q_loop')
    q_pair(False, True)
    A('s_sub_u32 s41, s41, 1')
    A('s_cmp_lg_u32 s41, 0')
    A.flush()
    A(f's_cbranch_scc1 {name}_q_loop')
    q_pair(False, False)
    for i in q_ops(ACC_C, 's53', 64):
        A(i)
    stamp_dump(A)
    A('s_endpgm')

    A.label(f'{name}_kv')
    A('s_movk_i32 s48, 3277')
    A('s_movk_i32 s49, 320')
    for cv in range(5):
        t = TMP
        A(f'v_add_u32 v{t}, {32 * cv}, v{V_L31}')
        A(f'v_mul_lo_u32 v{t + 1}, v{t}, s48')
        A(f'v_lshrrev_b32 v{t + 1}, 16, v{t + 1}')
        A(f'v_mul_u32_u24 v{t + 1}, 20, v{t + 1}')
        A(f'v_sub_u32 v{t}, v{t}, v{t + 1}')
        A(f'v_lshlrev_b32 v{t}, 2, v{t}')
        A(f'v_mul_lo_u32 v{t + 1}, v{V_HF}, s49')
        A(f'v_add_u32 v{VKV + cv}, v{t}, v{t + 1}')
    A(f'v_lshlrev_b32 v{V_EXW}, 4, v{V_LANE}')
    A(f'v_add_u32 v{V_EXW}, {EXB}, v{V_EXW}')
    V_EXO = V_OUT
    A('s_lshl_b32 s48, s34, 12')
    A(f'v_add_u32 v{V_EXO}, s48, v{V_EXW}')
    for j in range(4):
        A(f'v_accvgpr_write_b32 a{84 + j}, v{ONES}')
    A('s_sub_u32 s48, s33, 2')
    A('s_lshl_b32 s54, s32, 5'); A('s_lshl_b32 s42, s48, 3'); A('s_add_u32 s54, s54, s42')
    A('s_mul_i32 s54, s54, 1600'); A(f's_add_u32 s54, s54, {OFF_KVP}')
    A('s_mul_i32 s55, s32, 2560'); A('s_mul_i32 s42, s48, 640'); A('s_add_u32 s55, s55, s42')
    A(f's_add_u32 s55, s55, {OFF_ZP}')
    V_ZO = V_SP if not STAMP else None
    PK, PV = SS, SS + 8
    D2 = 64

    def k_ops():
        ops = []
        for i in range(16):
            ops += phi_ops(ACC_A + i, ACC_A + i, TMP + (i % 8))
        out = []
        for b in range(0, 16, 4):
            for k in range(6):
                for i in range(b, b + 4):
                    out.append(ops[6 * i + k])
        for j in range(8):
            out.append(f'v_cvt_pk_bf16_f32 v{PK + j}, v{ACC_A + 2 * j}, v{ACC_A + 2 * j + 1}')
        return out

    def v_ops(c):
        sl = (c % 2) * 16384
        out = []
        for j in range(8):
            out.append(f'v_cvt_pk_bf16_f32 v{PV + j}, v{ACC_C + 2 * j}, v{ACC_C + 2 * j + 1}')
        out.append(f'ds_write_b128 v{V_EXO}, v[{PK}:{PK + 3}] offset:{sl}')
        out.append(f'ds_write_b128 v{V_EXO}, v[{PK + 4}:{PK + 7}] offset:{sl + 1024}')
        out.append(f'ds_write_b128 v{V_EXO}, v[{PV}:{PV + 3}] offset:{sl + 2048}')
        out.append(f'ds_write_b128 v{V_EXO}, v[{PV + 4}:{PV + 7}] offset:{sl + 3072}')
        return out

    def job_block(ck, cv):
        for u in range(4):
            for h in range(2):
                A(f'ds_read_b128 a[{8 * u + 4 * h}:{8 * u + 4 * h + 3}], v{V_EXW} offset:{(ck % 2) * 16384 + u * 4096 + h * 1024}')
                if cv is not None:
                    A(f'ds_read_b128 a[{32 + 8 * u + 4 * h}:{32 + 8 * u + 4 * h + 3}], v{V_EXW} offset:{(cv % 2) * 16384 + u * 4096 + 2048 + h * 1024}')
        n = 0
        per = 2 if cv is not None else 1
        for u in range(4):
            for h in range(2):
                n += 1
                A(f's_waitcnt lgkmcnt({per * (8 - n)})')
                b = f'a[{32 + 8 * u + 4 * h}:{32 + 8 * u + 4 * h + 3}]' if cv is not None else 'a[84:87]'
                c = '0' if n == 1 else f'a[{D2}:{D2 + 15}]'
                A(f'v_mfma_f32_32x32x16_bf16 a[{D2}:{D2 + 15}], a[{8 * u + 4 * h}:{8 * u + 4 * h + 3}], {b}, {c}')
        if cv is None:
            A(f'v_lshlrev_b32 v{TMP}, 4, v{V_HF}')
            A(f's_add_u32 s42, s55, {128 * ck}')
            A('s_mov_b32 exec_lo, 1'); A('s_mov_b32 exec_hi, 1')
            for q in range(4):
                A(f'buffer_store_dwordx4 a[{D2 + 4 * q}:{D2 + 4 * q + 3}], v{TMP}, s[28:31], s42 offen offset:{32 * q}')
            A('s_mov_b64 exec, -1')
            return
        A(f's_add_u32 s42, s54, {32 * ck * 80}')
        for i in range(16):
            masks = []
            for hf in range(2):
                nk = 32 * ck + 8 * (i >> 2) + 4 * hf + (i & 3)
                m = 0
                for l in range(32):
                    if (32 * cv + l) // 20 == nk // 20:
                        m |= 1 << l
                masks.append(m)
            if not (masks[0] or masks[1]):
                continue
            A(f's_mov_b32 exec_lo, 0x{masks[0]:x}')
            A(f's_mov_b32 exec_hi, 0x{masks[1]:x}')
            A(f'buffer_store_dword a{D2 + i}, v{VKV + cv}, s[28:31], s42 offen offset:{(8 * (i >> 2) + (i & 3)) * 80}')
        A('s_mov_b64 exec, -1')

    def jobs(c):
        jl = [(c, c), (c, None)]
        if c > 0:
            jl += [(c - 1, c), (c, c - 1)]
        lab = f'{name}_job{c}'
        for w in range(4):
            if w < 3:
                A(f's_cmp_lg_u32 s34, {w}')
                A(f's_cbranch_scc1 {lab}_{w + 1}')
            if w < len(jl):
                job_block(*jl[w])
            if w < 3:
                A.flush()
                A(f's_branch {lab}_done')
                A.label(f'{lab}_{w + 1}')
        A.flush()
        A.label(f'{lab}_done')

    for c in range(5):
        prefetch = c < 4
        A('s_add_u32 s48, s35, s37')
        A('s_add_u32 s49, s48, s36')
        head(A, 10)
        mfma_chunk(A, ACC_A, False, v_ops(c - 1) if c > 0 else [], dma_ops('s[20:23]', 's48') if prefetch else None)
        advance_bufs(A)
        A('s_waitcnt lgkmcnt(0)')
        head(A, 10 if prefetch else 0)
        if c > 0:
            jobs(c - 1)
        mfma_chunk(A, ACC_C, False, k_ops(), dma_ops('s[24:27]', 's49') if prefetch else None)
        advance_bufs(A)
        A('s_mov_b32 s35, s48')
    A('s_barrier')
    for i in v_ops(4):
        A(i)
    A('s_waitcnt lgkmcnt(0)')
    A('s_barrier')
    jobs(4)
    stamp_dump(A)
    A.label(f'{name}_end')
    A('s_endpgm')
```

```python
from asmlib import Asm
from layout import *

K15_LDS = 2560
EPS6 = 0x358637bd


import os
PFD = 'pfd' in os.environ.get('K15FLAGS', '').split(',')
NPF = 12 if PFD else 0


def prefetch(A):
    if not PFD:
        return
    A('s_lshr_b32 s23, s2, 3')
    A('s_mul_i32 s23, s23, 46080')
    A('v_lshlrev_b32 v216, 4, v0')
    for i in range(12):
        A(f'buffer_load_dwordx4 v[220:223], v216, s[28:31], s23 offen')
        if i < 11:
            A('s_add_u32 s23, s23, 4096')


def gen_k15(A, name):
    A.raw(f'.globl {name}')
    A.raw('.p2align 8')
    A.raw(f'.type {name},@function')
    A.label(name)
    A('s_cmp_ge_u32 s2, 384')
    A(f's_cbranch_scc1 {name}_end')
    A('s_load_dwordx2 s[4:5], s[0:1], 16')
    A('s_load_dwordx2 s[6:7], s[0:1], 72')
    A('s_load_dwordx2 s[26:27], s[0:1], 48')
    A('s_waitcnt lgkmcnt(0)')
    A('s_mov_b32 s8, s4'); A('s_and_b32 s9, s5, 0xffff'); A(f's_mov_b32 s10, {640 * 1280}'); A('s_mov_b32 s11, 0x20000')
    A('s_mov_b32 s12, s6'); A('s_and_b32 s13, s7, 0xffff'); A(f's_mov_b32 s14, {WS_END}'); A('s_mov_b32 s15, 0x20000')
    A('v_lshlrev_b32 v1, 2, v0')
    A('s_mov_b32 s28, s26'); A('s_and_b32 s29, s27, 0xffff'); A(f's_mov_b32 s30, {1728 * 1280}'); A('s_mov_b32 s31, 0x20000')
    A('s_cmp_ge_u32 s2, 256')
    A(f's_cbranch_scc1 {name}_a')
    A('s_lshr_b32 s16, s2, 3')
    A('s_and_b32 s17, s2, 7')
    A('s_movk_i32 s18, 205')
    A('v_mul_lo_u32 v2, v0, s18')
    A('v_lshrrev_b32 v2, 13, v2')
    A('v_mul_u32_u24 v3, 40, v2')
    A('v_sub_u32 v3, v0, v3')
    A('v_lshlrev_b32 v4, 2, v3')
    A('s_mul_i32 s18, s16, 25600')
    A('s_mul_i32 s19, s17, 160')
    A('s_add_u32 s18, s18, s19')
    for e in range(20):
        A(f's_add_u32 s20, s18, {e * 1280}')
        A(f'buffer_load_dword v{40 + e}, v4, s[8:11], s20 offen')
    A('s_mul_i32 s20, s16, 1600')
    A(f's_add_u32 s20, s20, {OFF_KVP}')
    A('v_cmp_gt_u32 vcc, 144, v0')
    A('v_add_u32 v5, 1024, v1')
    A('v_cndmask_b32 v5, v1, v5, vcc')
    for rb in range(16):
        A(f's_add_u32 s21, s20, {rb * 32 * 1600}')
        A(f'buffer_load_dword v{64 + rb}, v1, s[12:15], s21 offen')
        A(f'buffer_load_dword v{80 + rb}, v5, s[12:15], s21 offen')
    prefetch(A)
    A(f's_waitcnt vmcnt({NPF})')
    for rb in range(1, 16):
        A(f'v_add_f32 v64, v64, v{64 + rb}')
        A(f'v_add_f32 v80, v80, v{80 + rb}')
    A('ds_write_b32 v1, v64')
    A('ds_write_b32 v5, v80')
    A('s_waitcnt lgkmcnt(0)')
    A('s_barrier')
    A('s_mov_b32 s21, 0xffff0000')
    for e in range(20):
        A(f'v_lshlrev_b32 v{100 + e}, 16, v{40 + e}')
        A(f'v_and_b32 v{120 + e}, s21, v{40 + e}')
    A('v_mul_u32_u24 v6, 320, v2')
    for dd in range(4):
        for q in range(5):
            A(f'ds_read_b128 v[{140 + 20 * dd + 4 * q}:{140 + 20 * dd + 4 * q + 3}], v6 offset:{dd * 80 + q * 16}')
    A('s_waitcnt lgkmcnt(0)')
    A('s_movk_i32 s21, 5120')
    A('v_mul_lo_u32 v7, v2, s21')
    A('v_add_u32 v7, v7, v4')
    A(f's_add_u32 s22, s18, {OFF_WP}')
    A('v_cmp_gt_u32 vcc, 200, v0')
    A('s_and_saveexec_b64 s[24:25], vcc')
    for dd in range(4):
        lo, hi = 8, 9
        A(f'v_mul_f32 v{lo}, v{140 + 20 * dd}, v100')
        A(f'v_mul_f32 v{hi}, v{140 + 20 * dd}, v120')
        for e in range(1, 20):
            A(f'v_fmac_f32 v{lo}, v{140 + 20 * dd + e}, v{100 + e}')
            A(f'v_fmac_f32 v{hi}, v{140 + 20 * dd + e}, v{120 + e}')
        A(f'v_cvt_pk_bf16_f32 v{10 + dd}, v{lo}, v{hi}')
        A(f'buffer_store_dword v{10 + dd}, v7, s[12:15], s22 offen offset:{dd * 1280}')
    A('s_endpgm')
    A.label(f'{name}_a')
    A('s_sub_u32 s16, s2, 256')
    A('v_lshrrev_b32 v2, 5, v0')
    A('v_and_b32 v3, 31, v0')
    A('s_movk_i32 s18, 1280')
    A('v_mul_lo_u32 v4, v2, s18')
    A('v_mul_u32_u24 v5, 40, v3')
    A('v_add_u32 v4, v4, v5')
    A('s_mul_i32 s17, s16, 20480')
    A(f's_add_u32 s18, s17, {OFF_PQ}')
    A(f's_add_u32 s19, s18, {8 * 1280}')
    for it, sb in ((0, 's18'), (1, 's19')):
        for q in range(5):
            r = 100 + 10 * it + 2 * q
            A(f'buffer_load_dwordx2 v[{r}:{r + 1}], v4, s[12:15], {sb} offen offset:{8 * q}')
    A('v_cmp_gt_u32 vcc, 128, v0')
    A('v_add_u32 v6, 1024, v1')
    A('v_add_u32 v7, 2048, v1')
    A('v_cndmask_b32 v7, v1, v7, vcc')
    for rb in range(16):
        A(f's_mov_b32 s21, {OFF_ZP + rb * 2560}')
        A(f'buffer_load_dword v{20 + rb}, v1, s[12:15], s21 offen')
        A(f'buffer_load_dword v{40 + rb}, v6, s[12:15], s21 offen')
        A(f'buffer_load_dword v{60 + rb}, v7, s[12:15], s21 offen')
    prefetch(A)
    A(f's_waitcnt vmcnt({NPF})')
    for rb in range(1, 16):
        A(f'v_add_f32 v20, v20, v{20 + rb}')
        A(f'v_add_f32 v40, v40, v{40 + rb}')
        A(f'v_add_f32 v60, v60, v{60 + rb}')
    A('ds_write_b32 v1, v20')
    A('ds_write_b32 v6, v40')
    A('ds_write_b32 v7, v60')
    A('s_waitcnt lgkmcnt(0)')
    A('s_barrier')
    A('v_mul_u32_u24 v8, 80, v3')
    for q in range(5):
        A(f'ds_read_b128 v[{120 + 4 * q}:{120 + 4 * q + 3}], v8 offset:{16 * q}')
    A('s_waitcnt lgkmcnt(0)')
    A('s_mov_b32 s21, 0xffff0000')
    A(f's_mov_b32 s22, {EPS6}')
    A(f's_add_u32 s18, s17, {OFF_AP}')
    A(f's_add_u32 s19, s18, {8 * 1280}')
    for it, sb in ((0, 's18'), (1, 's19')):
        base = 100 + 10 * it
        for j in range(10):
            A(f'v_lshlrev_b32 v{140 + 2 * j}, 16, v{base + j}')
            A(f'v_and_b32 v{141 + 2 * j}, s21, v{base + j}')
        A('v_mul_f32 v9, v140, v120')
        for j in range(1, 20):
            A(f'v_fmac_f32 v9, v{140 + j}, v{120 + j}')
        A('v_add_f32 v9, s22, v9')
        A('v_rcp_f32 v9, v9')
        for j in range(20):
            A(f'v_mul_f32 v{140 + j}, v9, v{140 + j}')
        for j in range(10):
            A(f'v_cvt_pk_bf16_f32 v{base + j}, v{140 + 2 * j}, v{141 + 2 * j}')
        for q in range(5):
            r = base + 2 * q
            A(f'buffer_store_dwordx2 v[{r}:{r + 1}], v4, s[12:15], {sb} offen offset:{8 * q}')
    A.label(f'{name}_end')
    A('s_endpgm')
```

```python
from asmlib import Asm
from layout import *
import os
FL = os.environ.get('K1FLAGS', '').split(',')

LOG2E = 0x3fb8aa3b
NLOG2E = 0xbfb8aa3b
EPS6 = 0x358637bd
EPS5 = 0x3727c5ac
CHUNK = 40960
EXB = 3 * CHUNK
K1_LDS = EXB + 2 * 16384
STAMP = 'stamp' in FL
STAMP_LDS = K1_LDS
if STAMP:
    K1_LDS += 2048
STAMP_OFF = 16 << 20

V_LANE, V_L31, V_HF = 1, 2, 3
V_DMA, V_LRD, V_RD, V_OUT = 4, 5, 6, 7
V_XR = 8
V_XD = 12
VKV = 8
V_EXW = 13
V_SP, V_SL = 14, 15
ACC_A, ACC_C = 16, 32
SS = 48
FR = 64
TMP = 80
XF = 96
K1_VGPR = 256
K1_AGPR = 128


def stamp(A):
    if not STAMP:
        return
    A('s_memtime s[60:61]')
    A('s_waitcnt lgkmcnt(0)')
    A('v_accvgpr_write_b32 a80, s60')
    A('v_accvgpr_write_b32 a81, s61')
    A('s_nop 1')
    A(f'ds_write_b64 v{V_SP}, a[80:81]')
    A(f'v_add_u32 v{V_SP}, 8, v{V_SP}')
    A('s_waitcnt lgkmcnt(0)')


def stamp_init(A):
    if not STAMP:
        return
    A('s_lshl_b32 s62, s34, 9')
    A(f's_add_u32 s62, s62, {STAMP_LDS}')
    A(f'v_mov_b32 v{V_SP}, s62')
    A('v_accvgpr_write_b32 a80, 0')
    A('v_accvgpr_write_b32 a81, 0')
    A(f'v_lshl_add_u32 v{V_SL}, v{V_LANE}, 3, v{V_SP}')
    A('s_nop 1')
    A(f'ds_write_b64 v{V_SL}, a[80:81]')
    A('s_waitcnt lgkmcnt(0)')


def stamp_dump(A):
    if not STAMP:
        return
    stamp(A)
    A(f'ds_read_b64 a[80:81], v{V_SL}')
    A('s_lshl_b32 s62, s2, 2')
    A('s_add_u32 s62, s62, s34')
    A('s_lshl_b32 s62, s62, 9')
    A(f's_add_u32 s62, s62, {STAMP_OFF}')
    A(f'v_lshlrev_b32 v{V_SL}, 3, v{V_LANE}')
    A('s_waitcnt lgkmcnt(0)')
    A(f'buffer_store_dwordx2 a[80:81], v{V_SL}, s[28:31], s62 offen')


def dma_ops(srd, scol):
    ops = []
    for t in range(10):
        g = []
        if t == 0:
            g.append(f's_mov_b32 s42, {scol}')
        else:
            g.append('s_add_u32 s42, s42, s38')
        g.append(f's_add_u32 m0, s40, {t * 4096}')
        g.append(f'buffer_load_dwordx4 v{V_DMA}, {srd}, s42 offen lds')
        ops.append(g)
    return ops


def advance_bufs(A):
    A(f's_add_u32 s39, s39, {CHUNK}')
    A(f's_cmp_ge_u32 s39, {3 * CHUNK}')
    A(f's_cselect_b32 s39, 0, s39')
    A(f's_add_u32 s45, s45, {CHUNK}')
    A(f's_cmp_ge_u32 s45, {3 * CHUNK}')
    A(f's_cselect_b32 s45, 0, s45')
    A(f's_add_u32 s40, s45, s46')


def mfma_chunk(A, acc, transposed, fillers=(), dma=None, PF=3):
    A(f'v_add_u32 v{V_RD}, s39, v{V_LRD}')
    fillers = list(fillers)
    nf = len(fillers)
    NG = 33

    def rd(s):
        f = FR + 4 * (s % 4)
        A(f'ds_read_b64_tr_b16 v[{f}:{f + 1}], v{V_RD} offset:{s * 1024}')
        A(f'ds_read_b64_tr_b16 v[{f + 2}:{f + 3}], v{V_RD} offset:{s * 1024 + 256}')
    for s in range(PF):
        rd(s)
    done = 0
    for s in range(40):
        if s + PF < 40:
            rd(s + PF)
        A(f's_waitcnt lgkmcnt({2 * min(PF, 39 - s)})')
        f = FR + 4 * (s % 4)
        c = '0' if s == 0 else f'v[{acc}:{acc + 15}]'
        x = XF + 4 * s
        if transposed:
            A(f'v_mfma_f32_32x32x16_bf16 v[{acc}:{acc + 15}], v[{f}:{f + 3}], v[{x}:{x + 3}], {c}')
        else:
            A(f'v_mfma_f32_32x32x16_bf16 v[{acc}:{acc + 15}], v[{x}:{x + 3}], v[{f}:{f + 3}], {c}')
        if dma is not None and s % 4 == 1:
            for i in dma[s // 4]:
                A(i)
        if 1 <= s <= NG:
            want = (nf * s + NG - 1) // NG
            while done < want:
                A(fillers[done])
                done += 1
    assert done == nf


def phi_ops(dst, src, t1):
    return [f'v_mul_f32 v{t1}, s43, v{src}',
            f'v_min_f32 v{t1}, 0, v{t1}',
            f'v_exp_f32 v{t1}, v{t1}',
            f'v_max_f32 v{dst}, 0, v{src}',
            f'v_add_f32 v{dst}, v{dst}, v{t1}',
            f'v_add_f32 v{dst}, s44, v{dst}']


def store_rows_ops(vals, soff, inst_off):
    P = TMP + 8
    ops = []
    for j in range(8):
        ops.append(f'v_cvt_pk_bf16_f32 v{P + j}, v{vals + 2 * j}, v{vals + 2 * j + 1}')
    for pr in range(2):
        a, b = P + 4 * pr, P + 4 * pr + 2
        ops.append(f'v_permlane32_swap_b32 v{a}, v{b}')
        ops.append(f'v_permlane32_swap_b32 v{a + 1}, v{b + 1}')
    for pr in range(2):
        ops.append(f'buffer_store_dwordx4 v[{P + 4 * pr}:{P + 4 * pr + 3}], v{V_OUT}, s[28:31], {soff} offen offset:{inst_off + 32 * pr}')
    return ops


def head(A, nwait):
    stamp(A)
    A(f's_waitcnt vmcnt({nwait})')
    A('s_barrier')
    stamp(A)


def gen_k1(A, name):
    A.raw(f'.globl {name}')
    A.raw('.p2align 8')
    A.raw(f'.type {name},@function')
    A.label(name)
    A('s_cmp_ge_u32 s2, 256')
    A(f's_cbranch_scc1 {name}_end')
    A('s_load_dwordx4 s[4:7], s[0:1], 0')
    A('s_load_dwordx4 s[8:11], s[0:1], 32')
    A('s_load_dwordx2 s[12:13], s[0:1], 72')
    A('s_load_dwordx2 s[64:65], s[0:1], 48')
    A('s_and_b32 s42, s2, 7')
    A('s_lshr_b32 s43, s2, 3')
    A('s_and_b32 s32, s43, 15')
    A('s_lshr_b32 s43, s43, 4')
    A('s_lshl_b32 s33, s42, 1')
    A('s_add_u32 s33, s33, s43')
    A(f'v_and_b32 v{V_LANE}, 63, v0')
    A(f'v_lshrrev_b32 v{TMP}, 6, v0')
    A(f'v_and_b32 v{V_L31}, 31, v0')
    A(f'v_readfirstlane_b32 s34, v{TMP}')
    A(f'v_lshrrev_b32 v{V_HF}, 5, v{V_LANE}')
    A(f'v_lshrrev_b32 v{TMP}, 3, v{V_LANE}')
    A(f'v_mul_u32_u24 v{TMP}, 1280, v{TMP}')
    A(f'v_lshrrev_b32 v{TMP + 1}, 4, v{V_LANE}')
    A(f'v_and_b32 v{TMP + 2}, 7, v{V_LANE}')
    A(f'v_xor_b32 v{TMP + 2}, v{TMP + 2}, v{TMP + 1}')
    A(f'v_lshl_add_u32 v{V_XD}, v{TMP + 2}, 4, v{TMP}')
    A(f'v_xor_b32 v{V_XD + 1}, 64, v{V_XD}')
    A('s_waitcnt lgkmcnt(0)')
    A('s_mov_b32 s16, s4'); A('s_and_b32 s17, s5, 0xffff'); A(f's_mov_b32 s18, {2048 * 1280}'); A('s_mov_b32 s19, 0x20000')
    A('s_lshl_b32 s42, s32, 7'); A('s_lshl_b32 s43, s34, 5'); A('s_add_u32 s49, s42, s43')
    A('s_mul_i32 s50, s49, 1280')
    A('s_mul_i32 s51, s34, 20480'); A(f's_add_u32 s51, s51, {CHUNK}')

    def x_round(rho):
        for j in range(5):
            for o in range(4):
                A(f's_add_u32 m0, s51, {j * 4096 + o * 1024}')
                A(f's_add_u32 s42, s50, {o * 10240 + (5 * rho + j) * 128}')
                A(f'buffer_load_dwordx4 v{V_XD + (o & 1)}, s[16:19], s42 offen lds')
    x_round(0)
    A('s_mov_b32 s28, s12'); A('s_and_b32 s29, s13, 0xffff'); A(f's_mov_b32 s30, {(32 << 20) if STAMP else WS_END}'); A('s_mov_b32 s31, 0x20000')
    A('s_cmp_lg_u32 s2, 0')
    A(f's_cbranch_scc1 {name}_nozero')
    for i in range(4):
        A(f'v_mov_b32 v{TMP + 4 + i}, 0')
    A(f'v_lshlrev_b32 v{TMP + 1}, 4, v0')
    A(f's_mov_b32 s42, {OFF_FLG}')
    A(f'buffer_store_dwordx4 v[{TMP + 4}:{TMP + 7}], v{TMP + 1}, s[28:31], s42 offen')
    A.label(f'{name}_nozero')
    A('s_and_b32 s7, s7, 0xffff'); A('s_and_b32 s9, s9, 0xffff'); A('s_and_b32 s11, s11, 0xffff')
    A('s_cmp_lt_u32 s33, 6')
    A('s_cselect_b32 s20, s6, s8'); A('s_cselect_b32 s21, s7, s9')
    A('s_cselect_b32 s24, s6, s10'); A('s_cselect_b32 s25, s7, s11')
    A(f's_mov_b32 s22, {640 * 3456}'); A(f's_cselect_b32 s22, {640 * 3840}, s22')
    A('s_mov_b32 s26, s22')
    A('s_mov_b32 s23, 0x20000'); A('s_mov_b32 s27, 0x20000')
    A('s_mov_b32 s47, 3456'); A('s_cselect_b32 s47, 3840, s47')
    A('s_lshl_b32 s38, s47, 6')
    A('s_mul_i32 s35, s33, 640'); A('s_mov_b32 s36, 64'); A('s_mov_b32 s37, 128'); A('s_mov_b32 s41, 5')
    A('s_cmp_lt_u32 s33, 2')
    A(f's_cbranch_scc1 {name}_cols_done')
    A('s_sub_u32 s42, s33, 2'); A('s_mul_i32 s35, s42, 320'); A('s_add_u32 s35, s35, 1280')
    A('s_mov_b32 s36, 1280'); A('s_mov_b32 s37, 64')
    A('s_cmp_lt_u32 s33, 6')
    A(f's_cbranch_scc1 {name}_cols_done')
    A('s_sub_u32 s42, s33, 6')
    A('s_mul_i32 s35, s42, 6'); A('s_mul_i32 s43, s42, 5'); A('s_add_u32 s43, s43, 4')
    A('s_cmp_lt_u32 s42, 4')
    A('s_cselect_b32 s35, s35, s43'); A('s_cselect_b32 s41, 6, 5')
    A('s_lshl_b32 s35, s35, 6')
    A('s_mov_b32 s36, 0'); A('s_mov_b32 s37, 64')
    A.label(f'{name}_cols_done')
    stamp_init(A)
    stamp(A)
    A(f'v_lshrrev_b32 v{TMP + 2}, 2, v{V_LANE}')
    A('s_lshl_b32 s43, s34, 4')
    A(f'v_add_u32 v{TMP + 2}, s43, v{TMP + 2}')
    A(f'v_mul_lo_u32 v{V_DMA}, v{TMP + 2}, s47')
    A(f'v_and_b32 v{TMP + 2}, 3, v{V_LANE}')
    A(f'v_lshl_add_u32 v{V_DMA}, v{TMP + 2}, 4, v{V_DMA}')
    A('s_lshl_b32 s46, s34, 10')
    A('s_mov_b32 s40, s46')
    for g in dma_ops('s[20:23]', 's35'):
        for i in g:
            A(i)
    NPF = 0
    if 'pfw' in FL:
        NPF = 10
        A('s_lshl_b32 s48, s41, 2')
        A('s_sub_u32 s48, s48, 1')
        A(f'v_min_u32 v{TMP + 4}, s48, v{V_L31}')
        A(f'v_mul_lo_u32 v{TMP + 5}, v{V_HF}, s47')
        A(f'v_lshl_add_u32 v{TMP + 4}, v{TMP + 4}, 4, v{TMP + 5}')
        A('s_mul_i32 s48, s32, 40'); A('s_mul_i32 s42, s34, 10'); A('s_add_u32 s48, s48, s42')
        A('s_mul_i32 s48, s48, s47')
        A('s_add_u32 s48, s48, s35')
        A('s_cmp_lt_u32 s33, 2')
        A('s_cselect_b32 s42, 320, s36')
        A('s_add_u32 s42, s42, s48')
        A('s_lshl_b32 s52, s47, 1')
        for i in range(5):
            A(f'buffer_load_dwordx4 a[88:91], v{TMP + 4}, s[20:23], s48 offen')
            A(f'buffer_load_dwordx4 a[92:95], v{TMP + 4}, s[24:27], s42 offen')
            if i < 4:
                A('s_add_u32 s48, s48, s52')
                A('s_add_u32 s42, s42, s52')
    A(f'v_lshlrev_b32 v{V_LRD}, 3, v{TMP + 2}')
    A(f'v_bfe_u32 v{TMP + 3}, v{V_LANE}, 2, 2')
    A(f'v_lshl_add_u32 v{V_LRD}, v{TMP + 3}, 6, v{V_LRD}')
    A(f'v_bfe_u32 v{TMP + 3}, v{V_LANE}, 4, 1')
    A(f'v_lshl_add_u32 v{V_LRD}, v{TMP + 3}, 5, v{V_LRD}')
    A(f'v_lshl_add_u32 v{V_LRD}, v{V_HF}, 9, v{V_LRD}')
    A(f'v_add_u32 v{TMP}, s49, v{V_L31}')
    A('s_cmp_lt_u32 s33, 6')
    A('s_mov_b32 s43, 3456'); A('s_cselect_b32 s43, 1280, s43')
    A(f'v_mul_lo_u32 v{V_OUT}, v{TMP}, s43')
    A(f'v_lshl_add_u32 v{V_OUT}, v{V_HF}, 4, v{V_OUT}')
    A(f'v_bfe_u32 v{TMP + 1}, v{V_L31}, 1, 3')
    A(f'v_lshlrev_b32 v{TMP + 2}, 7, v{V_L31}')
    A(f'v_add_u32 v{TMP + 2}, s51, v{TMP + 2}')
    for q in range(4):
        A(f'v_add_u32 v{TMP + 3}, {2 * q}, v{V_HF}')
        A(f'v_xor_b32 v{TMP + 3}, v{TMP + 3}, v{TMP + 1}')
        A(f'v_lshl_add_u32 v{V_XR + q}, v{TMP + 3}, 4, v{TMP + 2}')
    A(f's_mov_b32 s43, {LOG2E}'); A(f's_mov_b32 s44, {EPS6}')
    ONES = TMP + 6
    A(f'v_mov_b32 v{ONES}, 0x3f803f80')
    acc = [TMP + 8 + i for i in range(8)]
    for a in acc:
        A(f'v_mov_b32 v{a}, 0')

    def x_read(rho):
        for s in range(20 * rho, 20 * rho + 20):
            A(f'ds_read_b128 v[{XF + 4 * s}:{XF + 4 * s + 3}], v{V_XR + (s & 3)} offset:{((s >> 2) % 5) * 4096}')

    def stats(rho):
        for d in range(80 * rho, 80 * rho + 80):
            A(f'v_dot2_f32_bf16 v{acc[d % 4]}, v{XF + d}, v{ONES}, v{acc[d % 4]}')
            A(f'v_dot2_f32_bf16 v{acc[4 + d % 4]}, v{XF + d}, v{XF + d}, v{acc[4 + d % 4]}')
    stamp(A)
    A(f's_waitcnt vmcnt({10 + NPF})')
    stamp(A)
    x_read(0)
    A('s_waitcnt lgkmcnt(0)')
    x_round(1)
    stats(0)
    stamp(A)
    A('s_waitcnt vmcnt(0)')
    stamp(A)
    x_read(1)
    A('s_waitcnt lgkmcnt(0)')
    A('s_barrier')
    A(f's_add_u32 s40, s46, {CHUNK}')
    A('s_add_u32 s48, s35, s36')
    for g in dma_ops('s[24:27]', 's48'):
        for i in g:
            A(i)
    A(f's_mov_b32 s45, {2 * CHUNK}')
    A('s_add_u32 s40, s45, s46')
    A('s_mov_b32 s39, 0')
    stats(1)
    A('s_nop 3')
    A(f'v_add_f32 v{acc[0]}, v{acc[0]}, v{acc[1]}'); A(f'v_add_f32 v{acc[2]}, v{acc[2]}, v{acc[3]}')
    A(f'v_add_f32 v{acc[4]}, v{acc[4]}, v{acc[5]}'); A(f'v_add_f32 v{acc[6]}, v{acc[6]}, v{acc[7]}')
    A(f'v_add_f32 v{acc[0]}, v{acc[0]}, v{acc[2]}'); A(f'v_add_f32 v{acc[4]}, v{acc[4]}, v{acc[6]}')
    A(f'v_mov_b32 v{acc[1]}, v{acc[0]}'); A(f'v_mov_b32 v{acc[5]}, v{acc[4]}')
    A(f'v_permlane32_swap_b32 v{acc[0]}, v{acc[1]}')
    A(f'v_permlane32_swap_b32 v{acc[4]}, v{acc[5]}')
    A(f'v_add_f32 v{acc[0]}, v{acc[0]}, v{acc[1]}')
    A(f'v_add_f32 v{acc[4]}, v{acc[4]}, v{acc[5]}')
    A(f's_mov_b32 s48, 0x3acccccd')
    A(f'v_mul_f32 v{acc[0]}, s48, v{acc[0]}')
    A(f'v_mul_f32 v{acc[4]}, s48, v{acc[4]}')
    A(f'v_fma_f32 v{acc[4]}, -v{acc[0]}, v{acc[0]}, v{acc[4]}')
    A(f'v_max_f32 v{acc[4]}, 0, v{acc[4]}')
    A(f'v_add_f32 v{acc[4]}, {EPS5}, v{acc[4]}')
    A(f'v_rsq_f32 v{acc[4]}, v{acc[4]}')
    A(f'v_mul_f32 v{acc[0]}, v{acc[0]}, v{acc[4]}')
    A(f'v_sub_f32 v{acc[0]}, 0, v{acc[0]}')
    A(f'v_mov_b32 v{acc[5]}, v{acc[4]}')
    A(f'v_mov_b32 v{acc[1]}, v{acc[0]}')
    assert acc[0] % 2 == 0 and acc[4] % 2 == 0
    A(f's_mov_b32 s48, 0xffff0000')
    for d in range(160):
        t = SS + 2 * (d % 8)
        A(f'v_lshlrev_b32 v{t}, 16, v{XF + d}')
        A(f'v_and_b32 v{t + 1}, s48, v{XF + d}')
        A(f'v_pk_fma_f32 v[{t}:{t + 1}], v[{t}:{t + 1}], v[{acc[4]}:{acc[5]}], v[{acc[0]}:{acc[1]}]')
        A(f'v_cvt_pk_bf16_f32 v{XF + d}, v{t}, v{t + 1}')
    stamp(A)
    A('s_cmp_lt_u32 s33, 2')
    A(f's_cbranch_scc1 {name}_q')
    A('s_cmp_lt_u32 s33, 6')
    A(f's_cbranch_scc1 {name}_kv')

    def sig_ops():
        ops = []
        for i in range(16):
            t = SS + i
            ops += [f'v_mul_f32 v{t}, s52, v{ACC_A + i}',
                    f'v_exp_f32 v{t}, v{t}',
                    f'v_add_f32 v{t}, 1.0, v{t}',
                    f'v_rcp_f32 v{t}, v{t}']
        out = []
        for b in range(0, 16, 4):
            for k in range(4):
                for i in range(b, b + 4):
                    out.append(ops[4 * i + k])
        return out

    def h_ops():
        ops = [f'v_mul_f32 v{ACC_C + i}, v{SS + i}, v{ACC_C + i}' for i in range(16)]
        return ops + store_rows_ops(ACC_C, 's53', 0)

    def wd_loads():
        A('s_cmp_lt_u32 s33, 10')
        A(f's_cbranch_scc1 {name}_wd_skip')
        A('s_and_b32 s65, s65, 0xffff'); A(f's_mov_b32 s66, {1728 * 1280}'); A('s_mov_b32 s67, 0x20000')
        A('s_sub_u32 s68, s33, 10'); A('s_lshl_b32 s68, s68, 4'); A('s_add_u32 s68, s68, s32')
        A('s_mul_i32 s68, s68, 18')
        A('s_mul_i32 s69, s68, 1280')
        A(f'v_lshlrev_b32 v{TMP}, 4, v0')
        for i in range(6):
            A(f'buffer_load_dwordx4 a[{96 + 4 * i}:{99 + 4 * i}], v{TMP}, s[64:67], s69 offen')
            if i < 5:
                A('s_add_u32 s69, s69, 4096')
        A.label(f'{name}_wd_skip')

    def wd_stores():
        A('s_cmp_lt_u32 s33, 10')
        A(f's_cbranch_scc1 {name}_wd_skip2')
        A('s_mul_i32 s69, s68, 160')
        A(f's_add_u32 s69, s69, {OFF_WD}')
        A('s_mov_b32 s42, 52429'); A('s_movk_i32 s43, 6554'); A(f's_mov_b32 s48, {1728 * 160}')
        for i in range(6):
            t = TMP
            A(f'v_add_u32 v{t}, {256 * i}, v0')
            A(f'v_mul_u32_u24 v{t + 1}, s42, v{t}')
            A(f'v_lshrrev_b32 v{t + 1}, 22, v{t + 1}')
            A(f'v_mul_u32_u24 v{t + 2}, 80, v{t + 1}')
            A(f'v_sub_u32 v{t}, v{t}, v{t + 2}')
            A(f'v_mul_u32_u24 v{t + 2}, s43, v{t}')
            A(f'v_lshrrev_b32 v{t + 2}, 16, v{t + 2}')
            A(f'v_mul_u32_u24 v{t + 3}, 10, v{t + 2}')
            A(f'v_sub_u32 v{t}, v{t}, v{t + 3}')
            A(f'v_mul_u32_u24 v{t + 2}, s48, v{t + 2}')
            A(f'v_mul_u32_u24 v{t + 1}, 160, v{t + 1}')
            A(f'v_lshl_add_u32 v{t}, v{t}, 4, v{t + 1}')
            A(f'v_add_u32 v{t + 4 + i}, v{t}, v{t + 2}')
        for i in range(6):
            if i == 5:
                A('v_cmp_gt_u32 vcc, 160, v0')
                A('s_and_saveexec_b64 s[70:71], vcc')
            A(f'buffer_store_dwordx4 a[{96 + 4 * i}:{99 + 4 * i}], v{TMP + 4 + i}, s[28:31], s69 offen')
        A('s_mov_b64 exec, -1')
        A.label(f'{name}_wd_skip2')

    def gu_pair(first, prefetch):
        A('s_add_u32 s48, s35, s37')
        head(A, 10)
        if not prefetch:
            wd_loads()
        mfma_chunk(A, ACC_A, True, [] if first else h_ops(), dma_ops('s[20:23]', 's48') if prefetch else None)
        advance_bufs(A)
        head(A, 10 if prefetch else 0)
        mfma_chunk(A, ACC_C, True, sig_ops(), dma_ops('s[24:27]', 's48') if prefetch else None)
        advance_bufs(A)
        A(f's_add_u32 s53, s35, {OFF_H}')
        A('s_mov_b32 s35, s48')
    A(f's_mov_b32 s52, {NLOG2E}')
    gu_pair(True, True)
    A('s_sub_u32 s41, s41, 2')
    A.flush()
    A.label(f'{name}_gu_loop')
    gu_pair(False, True)
    A('s_sub_u32 s41, s41, 1')
    A('s_cmp_lg_u32 s41, 0')
    A.flush()
    A(f's_cbranch_scc1 {name}_gu_loop')
    gu_pair(False, False)
    for i in h_ops():
        A(i)
    wd_stores()
    stamp_dump(A)
    A('s_endpgm')

    A.label(f'{name}_q')

    def q_ops(acc, soff, off):
        ops = []
        for i in range(16):
            ops += phi_ops(acc + i, acc + i, TMP + (i % 8))
        out = []
        for b in range(0, 16, 4):
            for k in range(6):
                for i in range(b, b + 4):
                    out.append(ops[6 * i + k])
        return out + store_rows_ops(acc, soff, off)

    def q_pair(first, prefetch):
        A('s_add_u32 s48, s35, s37')
        A('s_add_u32 s49, s48, s36')
        head(A, 10)
        mfma_chunk(A, ACC_A, True, [] if first else q_ops(ACC_C, 's53', 64), dma_ops('s[20:23]', 's48') if prefetch else None)
        advance_bufs(A)
        A(f's_add_u32 s53, s35, {OFF_PQ}')
        head(A, 10 if prefetch else 0)
        mfma_chunk(A, ACC_C, True, q_ops(ACC_A, 's53', 0), dma_ops('s[24:27]', 's49') if prefetch else None)
        advance_bufs(A)
        A('s_mov_b32 s35, s48')
    q_pair(True, True)
    A('s_sub_u32 s41, s41, 2')
    A.flush()
    A.label(f'{name}_q_loop')
    q_pair(False, True)
    A('s_sub_u32 s41, s41, 1')
    A('s_cmp_lg_u32 s41, 0')
    A.flush()
    A(f's_cbranch_scc1 {name}_q_loop')
    q_pair(False, False)
    for i in q_ops(ACC_C, 's53', 64):
        A(i)
    stamp_dump(A)
    A('s_endpgm')

    A.label(f'{name}_kv')
    A('s_movk_i32 s48, 3277')
    A('s_movk_i32 s49, 320')
    for cv in range(5):
        t = TMP
        A(f'v_add_u32 v{t}, {32 * cv}, v{V_L31}')
        A(f'v_mul_lo_u32 v{t + 1}, v{t}, s48')
        A(f'v_lshrrev_b32 v{t + 1}, 16, v{t + 1}')
        A(f'v_mul_u32_u24 v{t + 1}, 20, v{t + 1}')
        A(f'v_sub_u32 v{t}, v{t}, v{t + 1}')
        A(f'v_lshlrev_b32 v{t}, 2, v{t}')
        A(f'v_mul_lo_u32 v{t + 1}, v{V_HF}, s49')
        A(f'v_add_u32 v{VKV + cv}, v{t}, v{t + 1}')
    A(f'v_lshlrev_b32 v{V_EXW}, 4, v{V_LANE}')
    A(f'v_add_u32 v{V_EXW}, {EXB}, v{V_EXW}')
    V_EXO = V_OUT
    A('s_lshl_b32 s48, s34, 12')
    A(f'v_add_u32 v{V_EXO}, s48, v{V_EXW}')
    for j in range(4):
        A(f'v_accvgpr_write_b32 a{84 + j}, v{ONES}')
    A('s_sub_u32 s48, s33, 2')
    A('s_lshl_b32 s54, s32, 5'); A('s_lshl_b32 s42, s48, 3'); A('s_add_u32 s54, s54, s42')
    A('s_mul_i32 s54, s54, 1600'); A(f's_add_u32 s54, s54, {OFF_KVP}')
    A('s_mul_i32 s55, s32, 2560'); A('s_mul_i32 s42, s48, 640'); A('s_add_u32 s55, s55, s42')
    A(f's_add_u32 s55, s55, {OFF_ZP}')
    V_ZO = V_SP if not STAMP else None
    PK, PV = SS, SS + 8
    D2 = 64

    def k_ops():
        ops = []
        for i in range(16):
            ops += phi_ops(ACC_A + i, ACC_A + i, TMP + (i % 8))
        out = []
        for b in range(0, 16, 4):
            for k in range(6):
                for i in range(b, b + 4):
                    out.append(ops[6 * i + k])
        for j in range(8):
            out.append(f'v_cvt_pk_bf16_f32 v{PK + j}, v{ACC_A + 2 * j}, v{ACC_A + 2 * j + 1}')
        return out

    def v_ops(c):
        sl = (c % 2) * 16384
        out = []
        for j in range(8):
            out.append(f'v_cvt_pk_bf16_f32 v{PV + j}, v{ACC_C + 2 * j}, v{ACC_C + 2 * j + 1}')
        out.append(f'ds_write_b128 v{V_EXO}, v[{PK}:{PK + 3}] offset:{sl}')
        out.append(f'ds_write_b128 v{V_EXO}, v[{PK + 4}:{PK + 7}] offset:{sl + 1024}')
        out.append(f'ds_write_b128 v{V_EXO}, v[{PV}:{PV + 3}] offset:{sl + 2048}')
        out.append(f'ds_write_b128 v{V_EXO}, v[{PV + 4}:{PV + 7}] offset:{sl + 3072}')
        return out

    def job_block(ck, cv):
        for u in range(4):
            for h in range(2):
                A(f'ds_read_b128 a[{8 * u + 4 * h}:{8 * u + 4 * h + 3}], v{V_EXW} offset:{(ck % 2) * 16384 + u * 4096 + h * 1024}')
                if cv is not None:
                    A(f'ds_read_b128 a[{32 + 8 * u + 4 * h}:{32 + 8 * u + 4 * h + 3}], v{V_EXW} offset:{(cv % 2) * 16384 + u * 4096 + 2048 + h * 1024}')
        n = 0
        per = 2 if cv is not None else 1
        for u in range(4):
            for h in range(2):
                n += 1
                A(f's_waitcnt lgkmcnt({per * (8 - n)})')
                b = f'a[{32 + 8 * u + 4 * h}:{32 + 8 * u + 4 * h + 3}]' if cv is not None else 'a[84:87]'
                c = '0' if n == 1 else f'a[{D2}:{D2 + 15}]'
                A(f'v_mfma_f32_32x32x16_bf16 a[{D2}:{D2 + 15}], a[{8 * u + 4 * h}:{8 * u + 4 * h + 3}], {b}, {c}')
        if cv is None:
            A(f'v_lshlrev_b32 v{TMP}, 4, v{V_HF}')
            A(f's_add_u32 s42, s55, {128 * ck}')
            A('s_mov_b32 exec_lo, 1'); A('s_mov_b32 exec_hi, 1')
            for q in range(4):
                A(f'buffer_store_dwordx4 a[{D2 + 4 * q}:{D2 + 4 * q + 3}], v{TMP}, s[28:31], s42 offen offset:{32 * q}')
            A('s_mov_b64 exec, -1')
            return
        A(f's_add_u32 s42, s54, {32 * ck * 80}')
        for i in range(16):
            masks = []
            for hf in range(2):
                nk = 32 * ck + 8 * (i >> 2) + 4 * hf + (i & 3)
                m = 0
                for l in range(32):
                    if (32 * cv + l) // 20 == nk // 20:
                        m |= 1 << l
                masks.append(m)
            if not (masks[0] or masks[1]):
                continue
            A(f's_mov_b32 exec_lo, 0x{masks[0]:x}')
            A(f's_mov_b32 exec_hi, 0x{masks[1]:x}')
            A(f'buffer_store_dword a{D2 + i}, v{VKV + cv}, s[28:31], s42 offen offset:{(8 * (i >> 2) + (i & 3)) * 80}')
        A('s_mov_b64 exec, -1')

    def jobs(c):
        jl = [(c, c), (c, None)]
        if c > 0:
            jl += [(c - 1, c), (c, c - 1)]
        lab = f'{name}_job{c}'
        for w in range(4):
            if w < 3:
                A(f's_cmp_lg_u32 s34, {w}')
                A(f's_cbranch_scc1 {lab}_{w + 1}')
            if w < len(jl):
                job_block(*jl[w])
            if w < 3:
                A.flush()
                A(f's_branch {lab}_done')
                A.label(f'{lab}_{w + 1}')
        A.flush()
        A.label(f'{lab}_done')

    for c in range(5):
        prefetch = c < 4
        A('s_add_u32 s48, s35, s37')
        A('s_add_u32 s49, s48, s36')
        head(A, 10)
        mfma_chunk(A, ACC_A, False, v_ops(c - 1) if c > 0 else [], dma_ops('s[20:23]', 's48') if prefetch else None)
        advance_bufs(A)
        A('s_waitcnt lgkmcnt(0)')
        head(A, 10 if prefetch else 0)
        if c > 0:
            jobs(c - 1)
        mfma_chunk(A, ACC_C, False, k_ops(), dma_ops('s[24:27]', 's49') if prefetch else None)
        advance_bufs(A)
        A('s_mov_b32 s35, s48')
    A('s_barrier')
    for i in v_ops(4):
        A(i)
    A('s_waitcnt lgkmcnt(0)')
    A('s_barrier')
    jobs(4)
    stamp_dump(A)
    A.label(f'{name}_end')
    A('s_endpgm')
```

```python
from asmlib import Asm
from layout import *
import os

SLOT = 18432
BOFF = 8192
WREG = 2 * SLOT
SCR = 4 * WREG
K2_LDS = SCR + 16384
EPS6 = 0x358637bd
NLOG2E = 0xbfb8aa3b
FL = os.environ.get('K2FLAGS', '').split(',')
STAMP = 'stamp' in FL
STAMP_OFF = 16 << 20

V_LANE = 1
V_A = 2
V_BD = 3
V_RA0, V_RA1, V_RB, V_RB4 = 8, 9, 10, 11
V_X = 12
V_AE = 29
V_T = 13
F0 = 32
FSZ = 72
XR = 176
K2_VGPR = 256
K2_AGPR = 160
SLEEP0 = int(os.environ.get('SLEEP0', '48'))
SLEEP1 = int(os.environ.get('SLEEP1', '10'))
PRE = 3


class Stamper:
    def __init__(self):
        self.n = 0

    def __call__(self, A):
        if not STAMP:
            return
        assert self.n < 14
        A(f's_memtime s[{70 + 2 * self.n}:{71 + 2 * self.n}]')
        self.n += 1

    def dump(self, A):
        if not STAMP:
            return
        self(A)
        A('s_waitcnt lgkmcnt(0)')
        A('s_lshl_b32 s62, s2, 2')
        A('s_add_u32 s62, s62, s34')
        A('s_lshl_b32 s62, s62, 9')
        A(f's_add_u32 s62, s62, {STAMP_OFF}')
        A('s_mov_b64 exec, 1')
        for i in range(self.n):
            A(f'v_mov_b32 v2, s{70 + 2 * i}')
            A(f'v_mov_b32 v3, s{71 + 2 * i}')
            A(f'buffer_store_dwordx2 v[2:3], off, s[16:19], s62 offset:{8 * i}')
            A('s_nop 1')
        A('v_mov_b32 v2, 0')
        A('v_mov_b32 v3, 0')
        A(f'buffer_store_dwordx2 v[2:3], off, s[16:19], s62 offset:{8 * self.n}')
        A('s_mov_b64 exec, -1')


def gen_k2(A, name):
    A.raw(f'.globl {name}')
    A.raw('.p2align 8')
    A.raw(f'.type {name},@function')
    A.label(name)
    A('s_cmp_ge_u32 s2, 256')
    A(f's_cbranch_scc1 {name}_end')
    A('s_load_dwordx2 s[4:5], s[0:1], 0')
    A('s_load_dwordx4 s[8:11], s[0:1], 48')
    A('s_load_dwordx2 s[6:7], s[0:1], 72')
    A('s_load_dwordx2 s[50:51], s[0:1], 16')
    A('s_and_b32 s42, s2, 7')
    A('s_lshr_b32 s43, s2, 3')
    A('s_and_b32 s32, s43, 7')
    A('s_lshr_b32 s43, s43, 3')
    A('s_lshl_b32 s33, s42, 2')
    A('s_add_u32 s33, s33, s43')
    A(f'v_and_b32 v{V_LANE}, 63, v0')
    A(f'v_lshrrev_b32 v{V_T}, 6, v0')
    A(f'v_readfirstlane_b32 s34, v{V_T}')
    A('s_lshr_b32 s56, s2, 3')
    A('s_and_b32 s57, s2, 7')
    A('s_waitcnt lgkmcnt(0)')
    A('s_mov_b32 s12, s4'); A('s_and_b32 s13, s5, 0xffff'); A(f's_mov_b32 s14, {2048 * 1280}'); A('s_mov_b32 s15, 0x20000')
    A('s_mov_b32 s16, s6'); A('s_and_b32 s17, s7, 0xffff'); A(f's_mov_b32 s18, {(32 << 20) if STAMP else WS_END}'); A('s_mov_b32 s19, 0x20000')
    A('s_mov_b32 s20, s8'); A('s_and_b32 s21, s9, 0xffff'); A(f's_mov_b32 s22, {1728 * 1280}'); A('s_mov_b32 s23, 0x20000')
    A('s_mov_b32 s24, s10'); A('s_and_b32 s25, s11, 0xffff'); A(f's_mov_b32 s26, {2048 * 1280}'); A('s_mov_b32 s27, 0x20000')
    A('s_mov_b32 s52, s50'); A('s_and_b32 s53, s51, 0xffff'); A(f's_mov_b32 s54, {640 * 1280}'); A('s_mov_b32 s55, 0x20000')
    A(f's_mul_i32 s35, s34, {WREG}')
    for i in range(5):
        A(f'v_mov_b32 v{24 + i}, 0')
    A('s_cmp_ge_u32 s34, 2')
    A(f's_cbranch_scc1 {name}_paw_ld')

    VQ = 24
    ZR = 32
    A('s_movk_i32 s44, 1639')
    for i in range(5):
        t = V_T
        A(f'v_add_u32 v{t}, {64 * i}, v{V_LANE}')
        A(f'v_mul_lo_u32 v{t + 1}, v{t}, s44')
        A(f'v_lshrrev_b32 v{t + 1}, 16, v{t + 1}')
        A(f'v_mul_u32_u24 v{t + 2}, 40, v{t + 1}')
        A(f'v_sub_u32 v{t + 2}, v{t}, v{t + 2}')
        A(f'v_mul_u32_u24 v{t + 1}, 1280, v{t + 1}')
        A(f'v_lshl_add_u32 v{VQ + i}, v{t + 2}, 4, v{t + 1}')
    A('s_mul_i32 s58, s2, 10240')
    A('s_mul_i32 s59, s34, 640')
    A('s_add_u32 s58, s58, s59')
    A(f's_add_u32 s60, s58, {OFF_PQ}')
    A('s_mul_i32 s61, s34, 5120')
    A(f's_add_u32 s61, s61, {SCR}')
    for i in range(5):
        A(f's_add_u32 m0, s61, {i * 1024}')
        A(f'buffer_load_dwordx4 v{VQ + i}, s[16:19], s60 offen lds')
    A(f'v_and_b32 v{V_T}, 15, v{V_LANE}')
    A('s_lshl_b32 s44, s34, 4')
    A(f'v_add_u32 v{V_T}, s44, v{V_T}')
    A(f'v_mul_u32_u24 v{V_T}, 80, v{V_T}')
    A(f'v_lshrrev_b32 v{V_T + 1}, 4, v{V_LANE}')
    A(f'v_mul_u32_u24 v{V_T + 2}, 10240, v{V_T + 1}')
    A(f'v_add_u32 v{V_T}, v{V_T}, v{V_T + 2}')
    for p in range(4):
        A(f's_mov_b32 s44, {OFF_ZP + p * 2560}')
        for q in range(5):
            r = ZR + 20 * p + 4 * q
            A(f'buffer_load_dwordx4 v[{r}:{r + 3}], v{V_T}, s[16:19], s44 offen offset:{16 * q}')
    NPA_A = 25
    A(f's_branch {name}_pa_ld_done')

    A.label(f'{name}_paw_ld')
    KR = 32
    WOR = 96
    A('s_sub_u32 s44, s34, 2')
    A('s_mul_i32 s58, s56, 1600')
    A('s_mul_i32 s59, s44, 800')
    A('s_add_u32 s58, s58, s59')
    A(f's_add_u32 s58, s58, {OFF_KVP}')
    A(f'v_min_u32 v{V_T}, 49, v{V_LANE}')
    A(f'v_lshlrev_b32 v{V_T}, 4, v{V_T}')
    for p in range(16):
        A(f's_add_u32 s59, s58, {p * 51200}')
        A(f'buffer_load_dwordx4 v[{KR + 4 * p}:{KR + 4 * p + 3}], v{V_T}, s[16:19], s59 offen')
    A(f'v_min_u32 v{V_T + 1}, 39, v{V_LANE}')
    A(f'v_lshlrev_b32 v{V_T + 1}, 2, v{V_T + 1}')
    A('s_mul_i32 s58, s56, 25600')
    A('s_mul_i32 s59, s57, 160')
    A('s_add_u32 s58, s58, s59')
    for e in range(20):
        A(f's_add_u32 s59, s58, {e * 1280}')
        A(f'buffer_load_dword v{WOR + e}, v{V_T + 1}, s[52:55], s59 offen')
    A('s_mul_i32 s61, s44, 2560')
    A(f's_add_u32 s61, s61, {SCR + 10240}')
    A('s_mul_i32 s60, s57, 102400')
    A('s_mul_i32 s59, s56, 3200')
    A('s_add_u32 s60, s60, s59')
    A('s_mul_i32 s59, s44, 1600')
    A('s_add_u32 s60, s60, s59')
    A(f's_add_u32 s60, s60, {OFF_WP}')
    A.label(f'{name}_pa_ld_done')

    A(f'v_lshrrev_b32 v{V_T}, 3, v{V_LANE}')
    A(f'v_and_b32 v{V_T + 1}, 7, v{V_LANE}')
    A(f'v_xor_b32 v{V_T + 1}, v{V_T + 1}, v{V_T}')
    A(f'v_lshlrev_b32 v{V_T + 1}, 4, v{V_T + 1}')
    A(f'v_mul_u32_u24 v{V_A}, 3456, v{V_T}')
    A(f'v_add_u32 v{V_A}, v{V_A}, v{V_T + 1}')
    A(f'v_mul_u32_u24 v{V_AE}, 1280, v{V_T}')
    A(f'v_add_u32 v{V_AE}, v{V_AE}, v{V_T + 1}')
    A('s_movk_i32 s47, 6554')
    for ii in range(5):
        t = V_T
        A(f'v_add_u32 v{t}, {64 * ii}, v{V_LANE}')
        A(f'v_mul_lo_u32 v{t + 1}, v{t}, s47')
        A(f'v_lshrrev_b32 v{t + 1}, 16, v{t + 1}')
        A(f'v_mul_u32_u24 v{t + 2}, 10, v{t + 1}')
        A(f'v_sub_u32 v{t + 2}, v{t}, v{t + 2}')
        A(f'v_bfe_u32 v{t + 3}, v{t + 1}, 3, 1')
        A(f'v_lshlrev_b32 v{t + 3}, 1, v{t + 3}')
        A(f'v_sub_u32 v{t + 2}, v{t + 2}, v{t + 3}')
        A(f'v_add_u32 v{t + 3}, 10, v{t + 2}')
        A(f'v_cmp_gt_i32 vcc, 0, v{t + 2}')
        A(f'v_cndmask_b32 v{t + 2}, v{t + 2}, v{t + 3}, vcc')
        A(f'v_lshlrev_b32 v{t + 2}, 4, v{t + 2}')
        A(f'v_mul_u32_u24 v{t + 1}, 160, v{t + 1}')
        A(f'v_add_u32 v{V_BD + ii}, v{t + 1}, v{t + 2}')
    A('s_lshl_b32 s42, s33, 6')
    A('s_mul_i32 s36, s42, 3456')
    A('s_mul_i32 s43, s34, 896')
    A('s_add_u32 s36, s36, s43')
    A(f's_add_u32 s36, s36, {OFF_H}')
    A(f's_mul_i32 s37, s32, {1728 * 160}')
    A(f's_mul_i32 s43, s34, {7 * 64 * 160}')
    A('s_add_u32 s37, s37, s43')
    A(f's_add_u32 s37, s37, {OFF_WD}')
    A('s_mul_i32 s40, s42, 1280')
    A('s_lshl_b32 s43, s34, 8')
    A('s_add_u32 s40, s40, s43')
    A(f's_add_u32 s40, s40, {OFF_AP}')
    A('s_mul_i32 s41, s32, 102400')
    A(f's_mul_i32 s43, s34, {2 * 64 * 160}')
    A('s_add_u32 s41, s41, s43')
    A(f's_add_u32 s41, s41, {OFF_WP}')

    def issue_ops(n, ny):
        slot = (n & 1) * SLOT
        sw = n >= ny
        k = n - ny if sw else n
        ops = []
        for i in range(8):
            g = []
            if i == 0:
                g.append(f's_add_u32 s48, {"s40" if sw else "s36"}, {128 * k}')
            else:
                g.append(f's_add_u32 s48, s48, {8 * (1280 if sw else 3456)}')
            g.append(f's_add_u32 m0, s35, {slot + i * 1024}')
            g.append(f'buffer_load_dwordx4 v{V_AE if sw else V_A}, s[16:19], s48 offen' + (' sc1 lds' if sw else ' lds'))
            ops.append(g)
        for u in range(10):
            g = []
            if u == 0:
                g.append(f's_add_u32 s49, {"s41" if sw else "s37"}, {64 * k * 160}')
            if u == 5:
                g.append('s_add_u32 s49, s49, 5120')
            g.append(f's_add_u32 m0, s35, {slot + BOFF + u * 1024}')
            g.append(f'buffer_load_dwordx4 v{V_BD + u % 5}, s[16:19], s49 offen' + (' sc1 lds' if sw else ' lds'))
            ops.append(g)
        return ops

    def issue(n, sw):
        for g in issue_ops(n, sw):
            for i in g:
                A(i)

    ST = Stamper()
    ST(A)
    issue(0, 6)
    issue(1, 6)
    A(f'v_and_b32 v{V_T}, 15, v{V_LANE}')
    A(f'v_lshlrev_b32 v{V_T}, 7, v{V_T}')
    A(f'v_add_u32 v{V_T}, s35, v{V_T}')
    A(f'v_lshrrev_b32 v{V_T + 1}, 4, v{V_LANE}')
    A(f'v_and_b32 v{V_T + 2}, 7, v{V_LANE}')
    A(f'v_xor_b32 v{V_T + 2}, v{V_T + 2}, v{V_T + 1}')
    A(f'v_lshl_add_u32 v{V_RA0}, v{V_T + 2}, 4, v{V_T}')
    A(f'v_xor_b32 v{V_RA1}, 64, v{V_RA0}')
    A(f'v_bfe_u32 v{V_T + 2}, v{V_LANE}, 2, 2')
    A(f'v_lshl_add_u32 v{V_T + 2}, v{V_T + 1}, 3, v{V_T + 2}')
    A(f'v_mul_u32_u24 v{V_T + 2}, 160, v{V_T + 2}')
    A(f'v_bfe_u32 v{V_T + 3}, v{V_LANE}, 1, 1')
    A(f'v_bfe_u32 v{V_T + 4}, v{V_LANE}, 4, 1')
    A(f'v_lshl_add_u32 v{V_T + 3}, v{V_T + 4}, 1, v{V_T + 3}')
    A(f'v_lshl_add_u32 v{V_T + 2}, v{V_T + 3}, 4, v{V_T + 2}')
    A(f'v_and_b32 v{V_T + 3}, 1, v{V_LANE}')
    A(f'v_lshl_add_u32 v{V_T + 2}, v{V_T + 3}, 3, v{V_T + 2}')
    A(f's_add_u32 s44, s35, {BOFF}')
    A(f'v_add_u32 v{V_RB}, s44, v{V_T + 2}')
    A(f'v_mul_u32_u24 v{V_T + 3}, 160, v{V_T + 4}')
    A(f'v_add_u32 v{V_RB4}, 128, v{V_RB}')
    A(f'v_sub_u32 v{V_RB4}, v{V_RB4}, v{V_T + 3}')
    A(f'v_and_b32 v{V_T}, 15, v{V_LANE}')
    A('s_lshl_b32 s44, s34, 4')
    A('s_add_u32 s44, s44, s42')
    A(f'v_add_u32 v{V_T}, s44, v{V_T}')
    A('s_movk_i32 s44, 1280')
    A(f'v_mul_lo_u32 v{V_X}, v{V_T}, s44')
    A(f'v_lshl_add_u32 v{V_X}, v{V_T + 1}, 3, v{V_X}')
    A('s_mul_i32 s45, s32, 160')
    A(f'v_add_u32 v{V_X}, s45, v{V_X}')
    A('s_lshl_b32 s63, s2, 4')
    A('s_lshl_b32 s44, s34, 2')
    A('s_add_u32 s63, s63, s44')
    A(f's_add_u32 s63, s63, {OFF_FLG}')
    A('s_mov_b32 s64, 0xffff0000')
    A('s_cmp_ge_u32 s34, 2')
    A(f's_cbranch_scc1 {name}_paw')

    A('s_waitcnt vmcnt(36)')
    for p in range(1, 4):
        for j in range(20):
            A(f'v_add_f32 v{ZR + j}, v{ZR + j}, v{ZR + 20 * p + j}')
    for perm in ('v_permlane16_swap_b32', 'v_permlane32_swap_b32'):
        for j in range(20):
            A(f'v_mov_b32 v{ZR + 20 + j}, v{ZR + j}')
        for j in range(20):
            A(f'{perm} v{ZR + j}, v{ZR + 20 + j}')
        for j in range(20):
            A(f'v_add_f32 v{ZR + j}, v{ZR + j}, v{ZR + 20 + j}')
    A(f'v_and_b32 v{V_T}, 15, v{V_LANE}')
    A(f'v_mul_u32_u24 v{V_T}, 40, v{V_T}')
    A(f'v_lshrrev_b32 v{V_T + 1}, 4, v{V_LANE}')
    A(f'v_mul_u32_u24 v{V_T + 1}, 640, v{V_T + 1}')
    A(f'v_add3_u32 v{V_T}, v{V_T}, v{V_T + 1}, s61')
    PQR = 72
    U = 96
    for it in range(2):
        for q in range(5):
            r = PQR + 10 * it + 2 * q
            A(f'ds_read_b64 v[{r}:{r + 1}], v{V_T} offset:{it * 2560 + 8 * q}')
    A(f's_mov_b32 s44, {EPS6}')
    A('s_waitcnt lgkmcnt(0)')
    for it in range(2):
        for j in range(10):
            A(f'v_lshlrev_b32 v{U + 20 * it + 2 * j}, 16, v{PQR + 10 * it + j}')
            A(f'v_and_b32 v{U + 20 * it + 2 * j + 1}, s64, v{PQR + 10 * it + j}')
    for it in range(2):
        A(f'v_mul_f32 v{V_T + 2 + it}, v{U + 20 * it}, v{ZR}')
    for j in range(1, 20):
        for it in range(2):
            A(f'v_fmac_f32 v{V_T + 2 + it}, v{U + 20 * it + j}, v{ZR + j}')
    for it in range(2):
        A(f'v_add_f32 v{V_T + 2 + it}, s44, v{V_T + 2 + it}')
    for it in range(2):
        A(f'v_rcp_f32 v{V_T + 2 + it}, v{V_T + 2 + it}')
    for it in range(2):
        for j in range(20):
            A(f'v_mul_f32 v{U + 20 * it + j}, v{V_T + 2 + it}, v{U + 20 * it + j}')
        for j in range(10):
            A(f'v_cvt_pk_bf16_f32 v{PQR + 10 * it + j}, v{U + 20 * it + 2 * j}, v{U + 20 * it + 2 * j + 1}')
        for q in range(5):
            r = PQR + 10 * it + 2 * q
            A(f'ds_write_b64 v{V_T}, v[{r}:{r + 1}] offset:{it * 2560 + 8 * q}')
    A(f'v_lshl_add_u32 v{V_T + 1}, v{V_LANE}, 4, s61')
    A('s_waitcnt lgkmcnt(0)')
    for i in range(5):
        A(f'ds_read_b128 v[{U + 4 * i}:{U + 4 * i + 3}], v{V_T + 1} offset:{i * 1024}')
    A(f's_add_u32 s60, s58, {OFF_AP}')
    for i in range(5):
        A(f's_waitcnt lgkmcnt({4 - i})')
        A(f'buffer_store_dwordx4 v[{U + 4 * i}:{U + 4 * i + 3}], v{VQ + i}, s[16:19], s60 offen sc1')
    A(f's_branch {name}_pa_done')

    A.label(f'{name}_paw')
    A('s_waitcnt vmcnt(36)')
    for p in range(1, 16):
        for i in range(4):
            A(f'v_add_f32 v{KR + i}, v{KR + i}, v{KR + 4 * p + i}')
    A(f'v_min_u32 v{V_T}, 49, v{V_LANE}')
    A(f'v_lshl_add_u32 v{V_T}, v{V_T}, 4, s61')
    A(f'ds_write_b128 v{V_T}, v[{KR}:{KR + 3}]')
    WU = 120
    for e in range(20):
        A(f'v_lshlrev_b32 v{WU + 2 * e}, 16, v{WOR + e}')
        A(f'v_and_b32 v{WU + 2 * e + 1}, s64, v{WOR + e}')
    A(f'v_mov_b32 v{V_T + 1}, s61')
    A('s_waitcnt lgkmcnt(0)')
    KB = 32
    OUTR = 160
    PKR = 180

    def kread(d):
        for q in range(5):
            r = KB + 20 * (d % 3) + 4 * q
            A(f'ds_read_b128 v[{r}:{r + 3}], v{V_T + 1} offset:{d * 80 + 16 * q}')
    kread(0)
    kread(1)
    for d in range(10):
        if d + 2 < 10:
            kread(d + 2)
        A(f's_waitcnt lgkmcnt({5 * min(2, 9 - d)})')
        kb = KB + 20 * (d % 3)
        o = OUTR + 2 * d
        for e in range(20):
            kp = kb + (e & ~1)
            sel = 'op_sel:[0,1,0] op_sel_hi:[1,1,1]' if e & 1 else 'op_sel:[0,0,0] op_sel_hi:[1,0,1]'
            if e == 0:
                A(f'v_pk_mul_f32 v[{o}:{o + 1}], v[{WU}:{WU + 1}], v[{kp}:{kp + 1}] op_sel:[0,0] op_sel_hi:[1,0]')
            else:
                A(f'v_pk_fma_f32 v[{o}:{o + 1}], v[{WU + 2 * e}:{WU + 2 * e + 1}], v[{kp}:{kp + 1}], v[{o}:{o + 1}] {sel}')
    for d in range(10):
        A(f'v_cvt_pk_bf16_f32 v{PKR + d}, v{OUTR + 2 * d}, v{OUTR + 2 * d + 1}')
    A(f'v_min_u32 v{V_T}, 39, v{V_LANE}')
    A(f'v_lshl_add_u32 v{V_T}, v{V_T}, 2, s61')
    for d in range(10):
        A(f'ds_write_b32 v{V_T}, v{PKR + d} offset:{896 + d * 160}')
    A(f'v_lshlrev_b32 v{V_T + 2}, 4, v{V_LANE}')
    A(f'v_add_u32 v{V_T + 1}, s61, v{V_T + 2}')
    A('s_waitcnt lgkmcnt(0)')
    A(f'ds_read_b128 v[{KB}:{KB + 3}], v{V_T + 1} offset:896')
    A(f'ds_read_b128 v[{KB + 4}:{KB + 7}], v{V_T + 1} offset:{896 + 1024}')
    A('s_waitcnt lgkmcnt(0)')
    A(f'buffer_store_dwordx4 v[{KB}:{KB + 3}], v{V_T + 2}, s[16:19], s60 offen sc1')
    A(f'v_cmp_gt_u32 vcc, 36, v{V_LANE}')
    A('s_and_saveexec_b64 s[66:67], vcc')
    A(f'buffer_store_dwordx4 v[{KB + 4}:{KB + 7}], v{V_T + 2}, s[16:19], s60 offen offset:1024 sc1')
    A('s_mov_b64 exec, s[66:67]')
    A.label(f'{name}_pa_done')
    ST(A)

    def flag():
        A(f'v_mov_b32 v{V_T}, 1')
        A('s_mov_b64 exec, 1')
        A(f'buffer_store_dword v{V_T}, off, s[16:19], s63 sc1')
        A('s_mov_b64 exec, -1')

    def read_ops(n):
        so = (n & 1) * SLOT
        f0 = F0 + FSZ * (n & 1)
        ops = []
        for ks in range(2):
            for nt in range(5):
                f = f0 + 32 + 20 * ks + 4 * nt
                if nt < 4:
                    ops.append(f'ds_read_b64_tr_b16 v[{f}:{f + 1}], v{V_RB} offset:{so + ks * 5120 + 32 * nt}')
                    ops.append(f'ds_read_b64_tr_b16 v[{f + 2}:{f + 3}], v{V_RB} offset:{so + ks * 5120 + 640 + 32 * nt}')
                else:
                    ops.append(f'ds_read_b64_tr_b16 v[{f}:{f + 1}], v{V_RB4} offset:{so + ks * 5120}')
                    ops.append(f'ds_read_b64_tr_b16 v[{f + 2}:{f + 3}], v{V_RB4} offset:{so + ks * 5120 + 640}')
            for rt in range(4):
                f = f0 + 16 * ks + 4 * rt
                ops.append(f'ds_read_b128 v[{f}:{f + 3}], v{V_RA1 if ks else V_RA0} offset:{so + rt * 2048}')
        return ops

    POLLR = XR

    def poll_issue():
        for i in range(4):
            A(f'buffer_load_dwordx4 v[{POLLR + 4 * i}:{POLLR + 4 * i + 3}], v{V_FL}, s[16:19], s65 offen offset:{16 * i} sc1')

    def poll_check(tag):
        A('s_mov_b32 s45, 20000')
        A.label(f'{name}_poll{tag}')
        for i in range(1, 16):
            A(f'v_and_b32 v{POLLR}, v{POLLR}, v{POLLR + i}')
        A(f'v_cmp_ne_u32 vcc, 1, v{POLLR}')
        A('s_sub_u32 s45, s45, 1')
        A('s_cmp_eq_u32 s45, 0')
        A(f's_cbranch_scc1 {name}_poll_done{tag}')
        A('s_nop 1')
        A(f's_cbranch_vccz {name}_poll_done{tag}')
        A(f's_sleep {SLEEP1}')
        poll_issue()
        A('s_waitcnt vmcnt(0)')
        A(f's_branch {name}_poll{tag}')
        A.label(f'{name}_poll_done{tag}')
        if 'inv' in FL:
            A('buffer_inv sc1')

    def main_loop(N, ny, tag):
        for i in read_ops(0):
            A(i)
        A('s_waitcnt lgkmcnt(0)')
        issue(2, ny)
        for n in range(N):
            f0 = F0 + FSZ * (n & 1)
            rd = read_ops(n + 1) if n + 1 < N else []
            dm = issue_ops(n + 3, ny) if n + 3 < N else []
            ab = 80 if n >= ny else 0
            m = 0
            for ks in range(2):
                for rt in range(4):
                    for nt in range(5):
                        if m == PRE and n + 1 < N:
                            A(f's_waitcnt vmcnt({18 if n + 2 < N else 0})')
                            if n == 0:
                                flag()
                            if n in (0, ny - 3, N - 2):
                                ST(A)
                            if n + 4 == ny:
                                poll_issue()
                        if m == PRE + 16 and n + 1 < N:
                            A('s_waitcnt lgkmcnt(0)')
                            if n + 3 == ny:
                                poll_check(tag)
                                ST(A)
                        fa = f0 + 16 * ks + 4 * rt
                        fb = f0 + 32 + 20 * ks + 4 * nt
                        d = ab + 4 * (5 * rt + nt)
                        c = '0' if (n in (0, ny) and ks == 0) else f'a[{d}:{d + 3}]'
                        A(f'v_mfma_f32_16x16x32_bf16 a[{d}:{d + 3}], v[{fb}:{fb + 3}], v[{fa}:{fa + 3}], {c}')
                        if m >= PRE and rd:
                            A(rd.pop(0))
                            A(rd.pop(0))
                        elif m >= PRE + 16 and dm:
                            for i in dm.pop(0):
                                A(i)
                        if n == N - 1 and m == 0:
                            for t in range(5):
                                r = XR + 2 * t
                                A(f'buffer_load_dwordx2 v[{r}:{r + 1}], v{V_X}, s[12:15], 0 offen offset:{t * 32}')
                        m += 1
            assert not rd and not dm

    V_FL = 30
    A(f'v_lshlrev_b32 v{V_FL}, 6, v{V_LANE}')
    A(f's_mov_b32 s65, {OFF_FLG}')
    A('s_waitcnt vmcnt(20)')
    ST(A)
    n0 = ST.n
    A('s_cmp_eq_u32 s34, 3')
    A(f's_cbranch_scc1 {name}_w3')
    main_loop(9, 7, 'a')
    ST(A)
    n1 = ST.n
    A(f's_branch {name}_fin')
    A.label(f'{name}_w3')
    ST.n = n0
    main_loop(10, 6, 'b')
    ST(A)
    assert ST.n == n1
    A.label(f'{name}_fin')
    A(f'v_lshl_add_u32 v{V_T}, v{V_LANE}, 4, s35')
    A('s_lshl_b32 s44, s34, 12')
    A(f's_add_u32 s44, s44, {SCR}')
    A(f'v_lshl_add_u32 v{V_T + 1}, v{V_LANE}, 4, s44')
    A('s_nop 7')
    for j in range(36):
        A(f'ds_write_b128 v{V_T}, a[{4 * j}:{4 * j + 3}] offset:{j * 1024}')
    for j in range(36, 40):
        A(f'ds_write_b128 v{V_T + 1}, a[{4 * j}:{4 * j + 3}] offset:{(j - 36) * 1024}')
    A('s_mul_i32 s44, s34, 5120')
    A(f'v_lshl_add_u32 v{V_T}, v{V_LANE}, 4, s44')
    A(f'v_add_u32 v{V_T + 1}, {2 * WREG}, v{V_T}')
    A(f'v_lshlrev_b32 v{V_T + 2}, 4, v{V_LANE}')
    A(f'v_add_u32 v{V_T + 2}, {SCR - 1024}, v{V_T + 2}')
    A('s_waitcnt lgkmcnt(0)')
    A('s_barrier')
    P = F0

    def preg(nt, part, w):
        i = (nt * 2 + part) * 4 + w
        r = P + 4 * i
        if r + 3 >= XR:
            r += 16
        return r
    for nt in range(5):
        for w in range(4):
            r = preg(nt, 0, w)
            A(f'ds_read_b128 v[{r}:{r + 3}], v{V_T + (w >> 1)} offset:{(w & 1) * WREG + nt * 1024}')
    A('s_cmp_eq_u32 s34, 3')
    A(f's_cbranch_scc1 {name}_ex3')
    for nt in range(5):
        for w in range(4):
            r = preg(nt, 1, w)
            A(f'ds_read_b128 v[{r}:{r + 3}], v{V_T + (w >> 1)} offset:{(w & 1) * WREG + 20480 + nt * 1024}')
    A(f's_branch {name}_ex_done')
    A.label(f'{name}_ex3')
    for w in range(4):
        r = preg(0, 1, w)
        A(f'ds_read_b128 v[{r}:{r + 3}], v{V_T + (w >> 1)} offset:{(w & 1) * WREG + 20480}')
    for nt in range(1, 5):
        for w in range(4):
            r = preg(nt, 1, w)
            A(f'ds_read_b128 v[{r}:{r + 3}], v{V_T + 2} offset:{w * 4096 + nt * 1024}')
    A.label(f'{name}_ex_done')
    A(f's_mov_b32 s44, {NLOG2E}')
    A('s_waitcnt vmcnt(0) lgkmcnt(0)')
    for nt in range(5):
        xr = XR + 2 * nt
        xs = V_T + 8
        T1 = V_T + 3
        y = preg(nt, 0, 0)
        s = preg(nt, 1, 0)
        for i in range(4):
            A(f'v_add_f32 v{y + i}, v{y + i}, v{preg(nt, 0, 1) + i}')
        for i in range(4):
            A(f'v_add_f32 v{preg(nt, 0, 2) + i}, v{preg(nt, 0, 2) + i}, v{preg(nt, 0, 3) + i}')
        A(f'v_lshlrev_b32 v{xs}, 16, v{xr}')
        A(f'v_and_b32 v{xs + 1}, s64, v{xr}')
        A(f'v_lshlrev_b32 v{xs + 2}, 16, v{xr + 1}')
        A(f'v_and_b32 v{xs + 3}, s64, v{xr + 1}')
        for i in range(4):
            A(f'v_add_f32 v{y + i}, v{y + i}, v{preg(nt, 0, 2) + i}')
        for i in range(4):
            A(f'v_mul_f32 v{T1 + i}, s44, v{y + i}')
        for i in range(4):
            A(f'v_exp_f32 v{T1 + i}, v{T1 + i}')
        for i in range(4):
            A(f'v_add_f32 v{s + i}, v{s + i}, v{preg(nt, 1, 1) + i}')
        for i in range(4):
            A(f'v_add_f32 v{T1 + i}, 1.0, v{T1 + i}')
        for i in range(4):
            A(f'v_rcp_f32 v{T1 + i}, v{T1 + i}')
        for i in range(4):
            A(f'v_add_f32 v{preg(nt, 1, 2) + i}, v{preg(nt, 1, 2) + i}, v{preg(nt, 1, 3) + i}')
        for i in range(4):
            A(f'v_mul_f32 v{T1 + i}, v{T1 + i}, v{y + i}')
        for i in range(4):
            A(f'v_add_f32 v{s + i}, v{s + i}, v{preg(nt, 1, 2) + i}')
        for i in range(4):
            A(f'v_fma_f32 v{xs + i}, v{s + i}, v{T1 + i}, v{xs + i}')
        A(f'v_cvt_pk_bf16_f32 v{xr}, v{xs}, v{xs + 1}')
        A(f'v_cvt_pk_bf16_f32 v{xr + 1}, v{xs + 2}, v{xs + 3}')
        A(f'buffer_store_dwordx2 v[{xr}:{xr + 1}], v{V_X}, s[24:27], 0 offen offset:{nt * 32}')
    ST.dump(A)
    A.label(f'{name}_end')
    A('s_endpgm')
```

```python
OFF_PQ = 0
OFF_H = OFF_PQ + 2048 * 640 * 2
OFF_KVP = OFF_H + 2048 * 1728 * 2
KVW = 13 * 4096
OFF_ZP = OFF_KVP + 64 * KVW
OFF_AP = OFF_ZP + 16 * 640 * 4
OFF_WP = OFF_AP + 2048 * 640 * 2
OFF_CNT = OFF_WP + 640 * 640 * 2
OFF_FLG = OFF_CNT
OFF_WD = OFF_FLG + 4096
OFF_RS = OFF_WD + 1728 * 1280
OFF_CS = OFF_RS + 16384
WS_END = OFF_CS + 2 * 5376 * 4
assert OFF_FLG % 128 == 0 and OFF_WP % 128 == 0 and OFF_AP % 128 == 0 and OFF_WD % 128 == 0
```

```python
import sys
from asmlib import Asm
from layout import *
import k1, k15
import k2c as k2

NAME = "recurrent_scan__linear_attn_block__glu_gated_glu__prompt"
hdr = open(f"cdna_kernels/{NAME}.s.ref").read().split("; Override launch geometry")[0]

def kd(name, vgpr, accum, sgpr=102):
    return f""".p2align 6
.amdhsa_kernel {name}
  .amdhsa_next_free_vgpr {vgpr}
  .amdhsa_next_free_sgpr {sgpr}
  .amdhsa_accum_offset {accum}
  .amdhsa_group_segment_fixed_size 0
  .amdhsa_kernarg_size 80
  .amdhsa_user_sgpr_count 2
  .amdhsa_user_sgpr_kernarg_segment_ptr 1
  .amdhsa_system_sgpr_workgroup_id_x 1
.end_amdhsa_kernel
"""

A = Asm()
k1.gen_k1(A, "k1_kernel")
A2 = Asm()
k15.gen_k15(A2, "k15_kernel")
A3 = Asm()
k2.gen_k2(A3, "k2_kernel")
out = hdr
out += f"; @launch kernel=k1_kernel grid=(256,1,1) block=(256,1,1) lds={k1.K1_LDS}\n"
out += f"; @launch kernel=k2_kernel grid=(256,1,1) block=(256,1,1) lds={k2.K2_LDS}\n"
out += '.amdgcn_target "amdgcn-amd-amdhsa--gfx950"\n.text\n'
out += A.text() + A3.text()
out += '.section .rodata,"a"\n'
out += kd("k1_kernel", k1.K1_VGPR + k1.K1_AGPR, k1.K1_VGPR)
out += kd("k2_kernel", k2.K2_VGPR + k2.K2_AGPR, k2.K2_VGPR)
dst = sys.argv[1]
open(dst, "w").write(out)
print("nops:", A.nops, A2.nops, A3.nops, "bytes", len(out))
```

```python
import re

_REG = re.compile(r'^(v|a|s)(\d+)$')
_RNG = re.compile(r'^(v|a|s)\[(\d+):(\d+)\]$')

TRANS = ('v_exp_f32', 'v_rcp_f32', 'v_rsq_f32', 'v_log_f32', 'v_sqrt_f32', 'v_sin_f32', 'v_cos_f32')


def regs_of(tok):
    tok = tok.strip()
    neg = tok.startswith('-')
    if neg:
        tok = tok[1:]
    if tok.startswith('abs(') and tok.endswith(')'):
        tok = tok[4:-1]
    if tok.startswith('|') and tok.endswith('|'):
        tok = tok[1:-1]
    m = _REG.match(tok)
    if m:
        return {(m.group(1), int(m.group(2)))}
    m = _RNG.match(tok)
    if m:
        return {(m.group(1), i) for i in range(int(m.group(2)), int(m.group(3)) + 1)}
    if tok in ('vcc', 'vcc_lo', 'vcc_hi'):
        return {('vcc', 0)}
    if tok in ('exec', 'exec_lo', 'exec_hi'):
        return {('exec', 0)}
    if tok == 'm0':
        return {('m0', 0)}
    return set()


def split_ops(s):
    out, depth, cur = [], 0, ''
    for ch in s:
        if ch == '[' or ch == '(':
            depth += 1
        if ch == ']' or ch == ')':
            depth -= 1
        if ch == ',' and depth == 0:
            out.append(cur.strip())
            cur = ''
        else:
            cur += ch
    if cur.strip():
        out.append(cur.strip())
    return out


class Ins:
    __slots__ = ('kind', 'w', 'r', 'pos', 'passes', 'cread', 'wide_store', 'text', 'ab', 'dot', 'dsrc', 'dpp')


class Asm:
    def __init__(self):
        self.lines = []
        self.hist = []
        self.pos = 0
        self.nops = 0

    def raw(self, s):
        self.lines.append(s)

    def label(self, name):
        self.lines.append(name + ':')

    def comment(self, s):
        self.lines.append('    ; ' + s)

    def flush(self, n=16):
        self(f's_nop {n - 1}')

    def analyze(self, text):
        ins = Ins()
        ins.text = text
        parts = text.split(None, 1)
        mn = parts[0]
        rest = parts[1] if len(parts) > 1 else ''
        ops = split_ops(rest)
        toks = []
        mods = []
        for i, o in enumerate(ops):
            fields = o.split()
            toks.append(fields[0])
            mods += fields[1:]
        ins.passes = 0
        ins.cread = set()
        ins.ab = set()
        ins.wide_store = False
        ins.dot = mn if mn.startswith('v_dot') else None
        ins.dsrc = (regs_of(toks[1]) | regs_of(toks[2])) if ins.dot else set()
        ins.dpp = '_dpp' in mn
        w, r = set(), set()
        if mn.startswith('v_mfma'):
            ins.kind = 'mfma'
            w |= regs_of(toks[0])
            ins.ab = regs_of(toks[1]) | regs_of(toks[2])
            ins.cread = regs_of(toks[3])
            r |= ins.ab | ins.cread
            ins.passes = 8 if '32x32' in mn else 4
        elif mn.startswith('v_cmp'):
            ins.kind = 'valu'
            w |= regs_of(toks[0])
            if mn.startswith('v_cmpx'):
                w |= {('exec', 0)}
            for t in toks[1:]:
                r |= regs_of(t)
        elif mn.startswith('v_permlane'):
            ins.kind = 'perm'
            w |= regs_of(toks[0]) | regs_of(toks[1])
            r |= regs_of(toks[0]) | regs_of(toks[1])
        elif mn.startswith('v_readfirstlane') or mn.startswith('v_readlane'):
            ins.kind = 'rdlane'
            w |= regs_of(toks[0])
            for t in toks[1:]:
                r |= regs_of(t)
        elif mn.startswith('v_nop'):
            ins.kind = 'nop'
        elif mn.startswith('v_'):
            ins.kind = 'trans' if any(mn.startswith(t) for t in TRANS) else 'valu'
            w |= regs_of(toks[0])
            for t in toks[1:]:
                r |= regs_of(t)
            if mn.startswith('v_fmac') or mn.startswith('v_dot2c') or mn.startswith('v_pk_fmac'):
                r |= regs_of(toks[0])
            if mn.startswith('v_add_co') or mn.startswith('v_addc_co') or mn.startswith('v_sub_co'):
                w |= regs_of(toks[1])
        elif mn.startswith('ds_read') or mn.startswith('ds_bpermute') or mn.startswith('ds_swizzle'):
            ins.kind = 'ds'
            w |= regs_of(toks[0])
            for t in toks[1:]:
                r |= regs_of(t)
        elif mn.startswith('ds_'):
            ins.kind = 'ds'
            for t in toks:
                r |= regs_of(t)
        elif mn.startswith('buffer_load') or mn.startswith('global_load'):
            ins.kind = 'vmem'
            if 'lds' in mods:
                for t in toks:
                    r |= regs_of(t)
                r |= {('m0', 0)}
                ins.kind = 'dma'
            else:
                w |= regs_of(toks[0])
                for t in toks[1:]:
                    r |= regs_of(t)
        elif mn.startswith('buffer_store') or mn.startswith('global_store') or mn.startswith('buffer_atomic'):
            ins.kind = 'vmem'
            for t in toks:
                r |= regs_of(t)
            if 'x3' in mn or 'x4' in mn:
                ins.wide_store = True
                ins.ab = regs_of(toks[0])
        elif mn == 'buffer_inv':
            ins.kind = 'vmem'
        elif mn.startswith('s_'):
            ins.kind = 'salu'
            if mn.startswith('s_cmp') or mn in ('s_waitcnt', 's_barrier', 's_nop', 's_endpgm', 's_branch',
                                                 's_setprio', 's_sleep') or mn.startswith('s_cbranch'):
                for t in toks:
                    r |= regs_of(t)
            else:
                w |= regs_of(toks[0])
                for t in toks[1:]:
                    r |= regs_of(t)
                if 'saveexec' in mn:
                    w |= {('exec', 0)}
        else:
            raise ValueError('unknown instr ' + text)
        ins.w, ins.r = w, r
        return ins, mn, toks

    def need(self, p, c):
        n = 0
        vg = lambda s: {x for x in s if x[0] in ('v', 'a')}
        sg = lambda s: {x for x in s if x[0] in ('s', 'vcc')}
        if p.dot:
            if c.dot == p.dot:
                if p.w & c.dsrc:
                    n = max(n, 3)
            elif p.w & (c.r | c.w):
                n = max(n, 3)
        if c.dpp and p.kind in ('valu', 'trans', 'perm') and vg(p.w) & c.r:
            n = max(n, 2)
        if p.kind in ('valu', 'trans', 'perm'):
            if c.kind == 'mfma' and vg(p.w) & c.r:
                n = max(n, 2)
            if c.kind == 'perm' and vg(p.w) & c.r:
                n = max(n, 2)
            if c.kind == 'rdlane' and vg(p.w) & c.r:
                n = max(n, 1)
            if p.kind == 'trans' and c.kind in ('valu', 'perm', 'mfma', 'rdlane') and vg(p.w) & c.r:
                n = max(n, 1 if c.kind != 'mfma' else 2)
            if ('exec', 0) in p.w and c.kind == 'mfma':
                n = max(n, 4)
        if p.kind in ('valu', 'rdlane'):
            if sg(p.w) & c.r:
                if c.kind in ('valu', 'trans', 'perm'):
                    n = max(n, 2)
                if c.kind == 'rdlane':
                    n = max(n, 4)
                if c.kind in ('vmem', 'dma'):
                    n = max(n, 5)
                if c.kind == 'salu':
                    n = max(n, 1)
        if p.kind == 'mfma':
            big = 12 if p.passes == 8 else 8
            if c.kind == 'mfma':
                if p.w & c.ab:
                    n = max(n, big)
                if p.w & c.cread:
                    if not (c.cread == p.w and c.passes == p.passes):
                        n = max(n, big)
                if (p.w & c.w) and not (c.w == p.w):
                    n = max(n, big)
            else:
                if p.w & (c.r | c.w):
                    n = max(n, big)
                if c.kind in ('valu', 'trans', 'perm') and (p.cread & c.w):
                    n = max(n, 7 if p.passes == 8 else 3)
        if p.wide_store and c.kind in ('valu', 'trans', 'perm', 'mfma') and (p.ab & c.w):
            n = max(n, 2)
        if p.kind == 'salu' and ('m0', 0) in p.w and c.kind == 'dma':
            n = max(n, 1)
        if p.kind == 'salu' and ('exec', 0) in p.w and c.kind in ('valu', 'trans', 'perm', 'ds', 'vmem', 'mfma'):
            pass
        return n

    def __call__(self, text):
        text = text.strip()
        ins, mn, toks = self.analyze(text)
        if mn == 's_nop':
            self.lines.append('    ' + text)
            self.pos += int(toks[0], 0) + 1
            return
        req = 0
        for p in self.hist:
            d = self.pos - p.pos - 1
            if d >= 16:
                continue
            nd = self.need(p, ins)
            if nd > d:
                req = max(req, nd - d)
        if req:
            self.lines.append(f'    s_nop {req - 1}')
            self.pos += req
            self.nops += req
        ins.pos = self.pos
        self.pos += 1
        self.lines.append('    ' + text)
        self.hist.append(ins)
        if len(self.hist) > 40:
            self.hist = self.hist[-40:]

    def text(self):
        return '\n'.join(self.lines) + '\n'
```

```python
from asmlib import Asm
from layout import *
import os
FL = os.environ.get('K1FLAGS', '').split(',')

LOG2E = 0x3fb8aa3b
NLOG2E = 0xbfb8aa3b
EPS6 = 0x358637bd
EPS5 = 0x3727c5ac
NSLOT = 5
XTRA = 160064
K1_LDS = XTRA + 2048
K1_BLOCK = 512

V_LANE, V_L31, V_HF = 1, 2, 3
VP = 4
VXA = 28
VWA = 11
VXC = 13
VWC = 15
V_OUT = 17
V_FLG = 18
V_T = 19
ACC = 32
ST = 128
TMP = 192
K1_VGPR = 208
K1_AGPR = 48
UPOFF = 6144 + 32

PATHS = {
    'gu': dict(NX=2, NW=3, tr=True, RG=12, stride=3456, NPX=4, NPW=3, XS=32768, WS=12352),
    'q': dict(NX=2, NW=2, tr=True, RG=16, stride=3840, NPX=4, NPW=2, XS=32768, WS=8192),
    'kv': dict(NX=1, NW=5, tr=False, RG=20, stride=3840, NPX=2, NPW=5, XS=16384, WS=20480),
}


STAMP = 'stamp' in FL
_sn = [0]


def stamp(A, reset=None):
    if not STAMP:
        return
    if reset is not None:
        _sn[0] = reset
    i = _sn[0]
    _sn[0] += 1
    A(f's_memtime s[{72 + 2 * i}:{73 + 2 * i}]')


def stamp_dump(A):
    if not STAMP:
        return
    stamp(A)
    n = _sn[0]
    A('s_waitcnt lgkmcnt(0)')
    A('s_lshl_b32 s42, s2, 3'); A('s_add_u32 s42, s42, s32'); A('s_lshl_b32 s42, s42, 9')
    A(f's_add_u32 s42, s42, {16 << 20}')
    A(f's_mov_b32 s22, {32 << 20}')
    A('s_mov_b64 exec, 1')
    for i in range(n):
        A(f'v_mov_b32 v{V_T + 1}, s{72 + 2 * i}'); A(f'v_mov_b32 v{V_T + 2}, s{73 + 2 * i}')
        A(f'buffer_store_dwordx2 v[{V_T + 1}:{V_T + 2}], off, s[20:23], s42 offset:{8 * i}')
        A('s_nop 2')
    A('s_mov_b64 exec, -1')


def phi_ops(dst, src, t1):
    return [f'v_mul_f32 v{t1}, s44, v{src}',
            f'v_min_f32 v{t1}, 0, v{t1}',
            f'v_exp_f32 v{t1}, v{t1}',
            f'v_max_f32 v{dst}, 0, v{src}',
            f'v_add_f32 v{dst}, v{dst}, v{t1}',
            f'v_add_f32 v{dst}, s45, v{dst}']


def phi2_ops(a, t, C, R):
    return [f'v_min_f32 v{t}, 0, v{a}',
            f'v_mul_f32 v{t}, v{C}, v{t}',
            f'v_exp_f32 v{t}, v{t}',
            f'v_max_f32 v{a}, 0, v{a}',
            f'v_fma_f32 v{a}, v{R}, v{a}, s45',
            f'v_add_f32 v{a}, v{a}, v{t}']


def allred(regs, rors, t):
    o = []
    for r in rors:
        for x in regs:
            o.append(f'v_add_f32_dpp v{x}, v{x}, v{x} row_ror:{r} row_mask:0xf bank_mask:0xf')
    for sw in ('v_permlane16_swap_b32', 'v_permlane32_swap_b32'):
        for i, x in enumerate(regs):
            o.append(f'v_mov_b32 v{t + i}, v{x}')
        for i, x in enumerate(regs):
            o.append(f'{sw} v{x}, v{t + i}')
        for i, x in enumerate(regs):
            o.append(f'v_add_f32 v{x}, v{x}, v{t + i}')
    return o


CST = []
for b1, n1, b2, n2, b3, n3 in zip([30, 36, 42, 48, 54, 4, 13, 17], [6, 6, 6, 6, 3, 6, 4, 3],
                                  [57, 63, 69, 75, 81, 10, 23, 27], [6, 6, 6, 6, 3, 3, 4, 3],
                                  [12, 12, 12, 12, 0, 20, 8, 6], [0, 0, 0, 0, 4, 3, 0, 0]):
    CST.append(b1 | (n1 << 7) | ((b2 - n1) << 10) | ((n1 + n2) << 17) | ((b3 - n1 - n2 + 8) << 21) | ((n1 + n2 + n3) << 26))
CSH = 5376 * 4


def gen_k1(A, name):
    A.raw(f'.globl {name}')
    A.raw('.p2align 8')
    A.raw(f'.type {name},@function')
    A.label(name)
    A('s_cmp_ge_u32 s2, 256')
    A(f's_cbranch_scc1 {name}_end')
    stamp(A, 0)
    A('s_load_dwordx4 s[4:7], s[0:1], 0')
    A('s_load_dwordx4 s[8:11], s[0:1], 32')
    A('s_load_dwordx2 s[14:15], s[0:1], 48')
    A('s_load_dwordx4 s[64:67], s[0:1], 64')
    A(f'v_and_b32 v{V_LANE}, 63, v0')
    A(f'v_lshrrev_b32 v{V_T}, 6, v0')
    A(f'v_and_b32 v{V_L31}, 31, v0')
    A(f'v_readfirstlane_b32 s32, v{V_T}')
    A(f'v_bfe_u32 v{V_HF}, v0, 5, 1')
    A('s_and_b32 s42, s2, 7')
    A('s_lshr_b32 s43, s2, 3')
    A('s_and_b32 s34, s43, 7')
    A('s_lshr_b32 s43, s43, 3')
    A('s_lshl_b32 s33, s42, 2')
    A('s_add_u32 s33, s33, s43')
    A(f'v_lshlrev_b32 v{V_T}, 2, v{V_LANE}')
    A('s_lshl_b32 s49, s2, 3')
    A('s_add_u32 s49, s49, s32')
    A('s_mul_i32 s48, s49, 1280')
    A('s_waitcnt lgkmcnt(0)')
    A('s_mov_b32 s24, s4'); A('s_and_b32 s25, s5, 0xffff'); A(f's_mov_b32 s26, {2048 * 1280}'); A('s_mov_b32 s27, 0x20000')
    A('s_mov_b32 s20, s66'); A('s_and_b32 s21, s67, 0xffff'); A(f's_mov_b32 s22, {WS_END}'); A('s_mov_b32 s23, 0x20000')
    A('s_and_b32 s7, s7, 0xffff'); A('s_and_b32 s9, s9, 0xffff'); A('s_and_b32 s11, s11, 0xffff')
    RSL = ST
    CSL = ST + 8
    CSA = ST + 32
    A(f's_mov_b32 s44, {LOG2E}'); A(f's_mov_b32 s45, {EPS6}')
    A('s_and_b32 s65, s65, 0xffff'); A('s_movk_i32 s66, 256'); A('s_mov_b32 s67, 0x20000')
    A('s_cmp_eq_u32 s32, 7')
    A('s_cselect_b32 s60, 4, -1')
    A('s_cmp_lt_u32 s33, 18')
    A(f's_cbranch_scc1 {name}_gu')
    A('s_cmp_lt_u32 s33, 23')
    A(f's_cbranch_scc1 {name}_q')
    A('s_cmp_lt_u32 s33, 31')
    A(f's_cbranch_scc1 {name}_kv')
    lbl = [0]

    def newl(s):
        lbl[0] += 1
        return f'{name}_{s}{lbl[0]}'

    def stats_setup():
        A('s_and_b32 s42, s2, 7')
        A(f's_mov_b32 s43, {CST[0]}')
        for j in range(1, 8):
            A(f's_cmp_eq_u32 s42, {j}')
            A(f's_cselect_b32 s43, {CST[j]}, s43')
        A('s_lshr_b32 s42, s2, 4')
        A('s_bfe_u32 s50, s43, 0x50015')
        A('s_sub_u32 s50, s50, 8')
        A('s_bfe_u32 s52, s43, 0x40011')
        A('s_bfe_u32 s47, s43, 0x7000a')
        A('s_cmp_lt_u32 s42, s52')
        A('s_cselect_b32 s50, s47, s50')
        A('s_bfe_u32 s52, s43, 0x30007')
        A('s_and_b32 s47, s43, 127')
        A('s_cmp_lt_u32 s42, s52')
        A('s_cselect_b32 s50, s47, s50')
        A('s_add_u32 s50, s50, s42')
        A('s_bfe_u32 s52, s43, 0x4001a')
        A('s_cmp_lt_u32 s42, s52')
        A('s_cselect_b32 s63, 1, 0')
        A('s_cselect_b32 s50, s50, 0')
        A('s_bfe_u32 s52, s2, 0x10003')
        A(f's_mul_i32 s62, s52, {CSH}')
        A('s_lshl_b32 s42, s50, 8')
        A('s_add_u32 s62, s62, s42')
        A(f's_add_u32 s62, s62, {OFF_CS}')
        A('s_sub_u32 s42, s50, 30'); A('s_sub_u32 s43, s50, 57')
        A('s_cmp_lt_u32 s50, 57')
        A('s_cselect_b32 s28, s8, s10'); A('s_cselect_b32 s29, s9, s11'); A('s_cselect_b32 s42, s42, s43')
        A('s_cmp_lt_u32 s50, 30')
        A('s_cselect_b32 s28, s6, s28'); A('s_cselect_b32 s29, s7, s29'); A('s_cselect_b32 s42, s50, s42')
        A('s_mov_b32 s43, 3456'); A('s_cselect_b32 s43, 3840, s43')
        A('s_mul_i32 s30, s43, 640'); A('s_mul_i32 s30, s30, s63'); A('s_mov_b32 s31, 0x20000')
        A('s_lshl_b32 s68, s42, 7')
        A('s_mul_i32 s50, s32, 40'); A('s_mul_i32 s52, s52, 320'); A('s_add_u32 s50, s50, s52')
        A(f'v_lshrrev_b32 v{V_T + 7}, 3, v{V_LANE}')
        A(f'v_add_u32 v{V_T + 7}, s50, v{V_T + 7}')
        A(f'v_mul_lo_u32 v{V_T + 7}, v{V_T + 7}, s43')
        A(f'v_and_b32 v{V_T + 8}, 7, v{V_LANE}')
        A(f'v_lshl_add_u32 v{V_T + 7}, v{V_T + 8}, 4, v{V_T + 7}')
        A(f'v_lshlrev_b32 v{V_T + 8}, 2, v{V_LANE}')
        A('s_lshl_b32 s69, s43, 3')

    def stats_loads():
        g = []
        for i in range(5):
            g.append([f'buffer_load_dword v{RSL + i}, v{V_T + 8}, s[24:27], s48 offen offset:{256 * i}'])
        for p in range(5):
            g.append([f'buffer_load_dwordx4 v[{CSL + 4 * p}:{CSL + 4 * p + 3}], v{V_T + 7}, s[28:31], s68 offen',
                      's_add_u32 s68, s68, s69'])
        return g

    def stats_compute():
        o = []
        a0, a1 = V_T, V_T + 1
        o += ['s_mov_b32 s42, 0x00003f80', 's_mov_b32 s43, 0x3f800000', 's_mov_b32 s50, 0x3f803f80']
        for i in range(5):
            o.append(f'v_dot2_f32_bf16 v{a0}, v{RSL + i}, s50, {"0" if i == 0 else f"v{a0}"}')
            o.append(f'v_dot2_f32_bf16 v{a1}, v{RSL + i}, v{RSL + i}, {"0" if i == 0 else f"v{a1}"}')
        cs = []
        for p in range(5):
            for e in range(4):
                cs.append(f'v_dot2_f32_bf16 v{CSA + 2 * e}, v{CSL + 4 * p + e}, s42, {"0" if p == 0 else f"v{CSA + 2 * e}"}')
                cs.append(f'v_dot2_f32_bf16 v{CSA + 2 * e + 1}, v{CSL + 4 * p + e}, s43, {"0" if p == 0 else f"v{CSA + 2 * e + 1}"}')
        rw = allred([a0, a1], (8, 4, 2, 1), V_T + 4)
        rw += ['s_mov_b32 s50, 0x3acccccd',
               f'v_mul_f32 v{a0}, s50, v{a0}',
               f'v_mul_f32 v{a1}, s50, v{a1}',
               f'v_fma_f32 v{a1}, -v{a0}, v{a0}, v{a1}',
               f'v_max_f32 v{a1}, 0, v{a1}',
               f'v_add_f32 v{a1}, {EPS5}, v{a1}',
               f'v_rsq_f32 v{a1}, v{a1}',
               f'v_sub_f32 v{a0}, 0, v{a0}',
               's_lshl_b32 s50, s49, 2',
               f's_add_u32 s50, s50, {OFF_RS}',
               's_add_u32 s52, s50, 8192']
        k = 0
        for i, x in enumerate(rw):
            o.append(x)
            want = (len(cs) * (i + 1)) // len(rw)
            while k < want:
                o.append(cs[k]); k += 1
        g = [[x] for x in o]
        g.append(['s_mov_b64 exec, 1',
                  f'buffer_store_dword v{a1}, off, s[20:23], s50 sc1',
                  f'buffer_store_dword v{a0}, off, s[20:23], s52 sc1',
                  's_mov_b64 exec, -1'])
        o = allred([CSA + e for e in range(8)], (8,), CSA + 8)
        o += [f'v_and_b32 v{V_T}, 7, v{V_LANE}',
              f'v_lshlrev_b32 v{V_T}, 5, v{V_T}',
              's_lshl_b32 s42, s32, 8',
              f's_add_u32 s42, s42, {XTRA}',
              f'v_add_u32 v{V_T}, s42, v{V_T}',
              f'ds_write_b128 v{V_T}, v[{CSA}:{CSA + 3}]',
              f'ds_write_b128 v{V_T}, v[{CSA + 4}:{CSA + 7}] offset:16']
        g += [[x] for x in o]
        return g

    def cs_phase2():
        l = newl('nop2')
        A('s_cmp_lg_u32 s32, 7')
        A(f's_cbranch_scc1 {l}')
        A('s_cmp_eq_u32 s63, 0')
        A(f's_cbranch_scc1 {l}')
        A(f'v_add_u32 v{V_T + 1}, {XTRA}, v{V_T + 8}')
        for u in range(8):
            A(f'ds_read_b32 v{CSA + u}, v{V_T + 1} offset:{256 * u}')
        A('s_waitcnt lgkmcnt(0)')
        for u in range(1, 8):
            A(f'v_add_f32 v{CSA}, v{CSA}, v{CSA + u}')
        A(f'buffer_store_dword v{CSA}, v{V_T + 8}, s[20:23], s62 offen sc1')
        A.flush(4)
        A.label(l)

    WDR = ACC + 64

    def wd_loads():
        A('s_mov_b32 s28, s14'); A('s_and_b32 s29, s15, 0xffff'); A(f's_mov_b32 s30, {1728 * 1280}'); A('s_mov_b32 s31, 0x20000')
        A('s_mul_i32 s51, s51, 36')
        A('s_mul_i32 s42, s51, 1280')
        A(f'v_lshlrev_b32 v{V_T}, 4, v0')
        for i in range(6):
            A(f'buffer_load_dwordx4 v[{WDR + 4 * i}:{WDR + 4 * i + 3}], v{V_T}, s[28:31], s42 offen')
            if i < 5:
                A('s_add_u32 s42, s42, 8192')
        return 6

    def wd_stores():
        A('s_mul_i32 s52, s51, 160')
        A(f's_add_u32 s52, s52, {OFF_WD}')
        A('s_mov_b32 s42, 52429'); A('s_movk_i32 s43, 6554'); A(f's_mov_b32 s48, {1728 * 160}')
        for i in range(6):
            t = V_T
            A(f'v_add_u32 v{t}, {512 * i}, v0')
            A(f'v_mul_u32_u24 v{t + 1}, s42, v{t}')
            A(f'v_lshrrev_b32 v{t + 1}, 22, v{t + 1}')
            A(f'v_mul_u32_u24 v{t + 2}, 80, v{t + 1}')
            A(f'v_sub_u32 v{t}, v{t}, v{t + 2}')
            A(f'v_mul_u32_u24 v{t + 2}, s43, v{t}')
            A(f'v_lshrrev_b32 v{t + 2}, 16, v{t + 2}')
            A(f'v_mul_u32_u24 v{t + 3}, 10, v{t + 2}')
            A(f'v_sub_u32 v{t}, v{t}, v{t + 3}')
            A(f'v_mul_u32_u24 v{t + 2}, s48, v{t + 2}')
            A(f'v_mul_u32_u24 v{t + 1}, 160, v{t + 1}')
            A(f'v_lshl_add_u32 v{t}, v{t}, 4, v{t + 1}')
            A(f'v_add_u32 v{t + 4 + i}, v{t}, v{t + 2}')
        for i in range(6):
            if i == 5:
                A('v_cmp_gt_u32 vcc, 320, v0')
                A('s_and_saveexec_b64 s[70:71], vcc')
            A(f'buffer_store_dwordx4 v[{WDR + 4 * i}:{WDR + 4 * i + 3}], v{V_T + 4 + i}, s[20:23], s52 offen')
        A('s_mov_b64 exec, -1')

    def zero_k2_flags():
        l = newl('nz')
        A('s_cmp_lg_u32 s2, 0')
        A(f's_cbranch_scc1 {l}')
        A('s_cmp_ge_u32 s32, 4')
        A(f's_cbranch_scc1 {l}')
        for i in range(4):
            A(f'v_mov_b32 v{TMP + i}, 0')
        A(f'v_lshlrev_b32 v{V_T}, 4, v0')
        A(f's_mov_b32 s42, {OFF_FLG}')
        A(f'buffer_store_dwordx4 v[{TMP}:{TMP + 3}], v{V_T}, s[20:23], s42 offen')
        A.flush(4)
        A.label(l)

    def publish():
        A(f'v_mov_b32 v{V_T}, 1')
        A('s_mov_b64 exec, 1')
        A(f'buffer_store_byte v{V_T}, off, s[64:67], s2 sc1')
        A('s_mov_b64 exec, -1')

    A('s_add_u32 s51, s34, 40')
    stats_setup()
    for g in stats_loads():
        for x in g:
            A(x)
    wd_loads()
    A('s_waitcnt vmcnt(6)')
    for g in stats_compute():
        for x in g:
            A(x)
    A('s_waitcnt vmcnt(0) lgkmcnt(0)')
    A('s_barrier')
    wd_stores()
    A('s_cmp_lg_u32 s32, 7')
    A(f's_cbranch_scc1 {name}_end')
    publish()
    A('s_endpgm')

    def gen_path(pn):
        P = PATHS[pn]
        NX, NW, TR, RG, STRIDE, XS, WS = P['NX'], P['NW'], P['tr'], P['RG'], P['stride'], P['XS'], P['WS']
        XB = 3 * XS
        assert XB + NSLOT * WS <= XTRA
        XF = lambda b, xt: b * 4 * NX + 4 * xt
        WF = lambda b, t: 8 * NX + b * 4 * NW + 4 * t
        AC = lambda xt, t: ACC + 16 * (xt * NW + t)
        A.label(f'{name}_{pn}')
        if pn == 'gu':
            A('s_mov_b32 s36, s33'); A('s_lshl_b32 s35, s34, 8')
        elif pn == 'q':
            A('s_sub_u32 s36, s33, 18'); A('s_lshl_b32 s35, s34, 8')
            A('s_lshl_b32 s51, s36, 3'); A('s_add_u32 s51, s51, s34')
        else:
            A('s_sub_u32 s42, s33, 23'); A('s_lshr_b32 s36, s42, 1')
            A('s_and_b32 s42, s42, 1'); A('s_lshl_b32 s42, s42, 3'); A('s_add_u32 s53, s42, s34')
            A('s_lshl_b32 s35, s53, 7')
        A('s_and_b32 s54, s32, 3')
        A('s_lshr_b32 s55, s32, 2')
        A('s_cmp_ge_u32 s32, 4')
        A(f's_cbranch_scc1 {name}_{pn}_w')

        def rd_setup():
            A(f's_lshl_b32 s42, s54, {13 if NX == 2 else 12}')
            A(f'v_bfe_u32 v{V_T}, v{V_L31}, 1, 3')
            A(f'v_xor_b32 v{V_T}, v{V_T}, v{V_HF}')
            A(f'v_lshlrev_b32 v{V_T + 1}, 7, v{V_L31}')
            A(f'v_add_u32 v{V_T + 1}, s42, v{V_T + 1}')
            A(f'v_lshl_add_u32 v{VXA}, v{V_T}, 4, v{V_T + 1}')
            for j in range(1, 4):
                A(f'v_xor_b32 v{VXA + j}, {32 * j}, v{VXA}')
            pitch = RG * 16
            A(f'v_bfe_u32 v{V_T}, v{V_LANE}, 2, 2')
            A(f'v_and_b32 v{V_T + 1}, 3, v{V_LANE}')
            A(f'v_lshlrev_b32 v{V_T + 1}, 3, v{V_T + 1}')
            A(f'v_mul_u32_u24 v{V_T + 2}, {pitch}, v{V_T}')
            A(f'v_add_u32 v{V_T + 1}, v{V_T + 1}, v{V_T + 2}')
            A(f'v_mul_u32_u24 v{V_T + 2}, {8 * pitch}, v{V_HF}')
            A(f'v_add_u32 v{V_T + 1}, v{V_T + 1}, v{V_T + 2}')
            A(f'v_bfe_u32 v{V_T + 2}, v{V_LANE}, 4, 1')
            A(f'v_mul_u32_u24 v{V_T + 2}, {UPOFF if pn == "gu" else 32}, v{V_T + 2}')
            A(f'v_add_u32 v{V_T + 1}, v{V_T + 1}, v{V_T + 2}')
            if pn == 'gu':
                A('s_mul_i32 s42, s55, 96'); A(f's_add_u32 s42, s42, {XB}')
                A(f'v_add_u32 v{VWA}, s42, v{V_T + 1}')
            elif pn == 'kv':
                A('s_mul_i32 s42, s55, 10240'); A(f's_add_u32 s42, s42, {XB}')
                A(f'v_add_u32 v{VWA}, s42, v{V_T + 1}')
            else:
                A('s_lshl_b32 s42, s55, 1')
                for tt in range(2):
                    A(f'v_add_u32 v{V_T + 2}, s42, v{V_T}')
                    if tt:
                        A(f'v_add_u32 v{V_T + 2}, 1, v{V_T + 2}')
                    A(f'v_and_b32 v{V_T + 2}, 3, v{V_T + 2}')
                    A(f'v_lshl_add_u32 v{V_T + 2}, v{V_T + 2}, 6, v{V_T + 1}')
                    A(f'v_add_u32 v{VWA + tt}, {XB}, v{V_T + 2}')

        NWA = 2 if pn == 'q' else 1

        def rd_ptr(par):
            return [f'v_add_u32 v{VXC + i}, s61, v{VXA + 2 * par + i}' for i in range(2)] + \
                   [f'v_add_u32 v{VWC + i}, s39, v{VWA + i}' for i in range(NWA)]

        def reads(b, q):
            ops = []
            for xt in range(NX):
                f = XF(b, xt)
                ops.append(f'ds_read_b128 a[{f}:{f + 3}], v{VXC + q} offset:{4096 * xt}')
            pitch = RG * 16
            for t in range(NW):
                f = WF(b, t)
                if pn == 'q':
                    ad, o = VWC + t, q * 16 * pitch
                elif pn == 'gu':
                    ad, o = VWC, q * 16 * pitch + 32 * t
                else:
                    ad, o = VWC, q * 16 * pitch + 64 * t
                ops.append(f'ds_read_b64_tr_b16 a[{f}:{f + 1}], v{ad} offset:{o}')
                ops.append(f'ds_read_b64_tr_b16 a[{f + 2}:{f + 3}], v{ad} offset:{o + 4 * pitch}')
            return ops

        def mfmas(b, first=False):
            ops = []
            for t in range(NW):
                for xt in range(NX):
                    a = AC(xt, t)
                    x, w = XF(b, xt), WF(b, t)
                    c = '0' if first else f'v[{a}:{a + 15}]'
                    if TR:
                        ops.append(f'v_mfma_f32_32x32x16_bf16 v[{a}:{a + 15}], a[{w}:{w + 3}], a[{x}:{x + 3}], {c}')
                    else:
                        ops.append(f'v_mfma_f32_32x32x16_bf16 v[{a}:{a + 15}], a[{x}:{x + 3}], a[{w}:{w + 3}], {c}')
            return ops

        def dma(NP):
            gs = []
            for p in range(NP):
                gs.append([f's_add_u32 m0, s40, {1024 * p}',
                           f'buffer_load_dwordx4 v{VP + p}, s[16:19], s37 offen lds'])
            return gs

        def adv_wr(r, par):
            if r == 'w':
                return ['s_add_u32 s37, s37, s38',
                        f's_add_u32 s40, s40, {WS}',
                        's_cmp_ge_u32 s40, s56',
                        's_cselect_b32 s40, s46, s40']
            hr = 16 * NX
            if par == 0:
                return [f's_add_u32 s37, s37, {hr * 1280}', f's_add_u32 s40, s40, {hr * 128}']
            return [f's_sub_u32 s37, s37, {hr * 1280 - 128}',
                    f's_add_u32 s40, s40, {XS - hr * 128}',
                    's_cmp_ge_u32 s40, s56',
                    's_cselect_b32 s40, s46, s40']

        def adv_rd(par):
            ops = [f's_add_u32 s39, s39, {WS}',
                   f's_cmp_ge_u32 s39, {NSLOT * WS}',
                   's_cselect_b32 s39, 0, s39']
            if par == 1:
                ops += [f's_add_u32 s61, s61, {XS}',
                        f's_cmp_ge_u32 s61, {3 * XS}',
                        's_cselect_b32 s61, 0, s61']
            return ops

        fill = dict(q=[], slots=0)

        def interleave(ms, early, late=()):
            n = len(ms)
            ne = (n + 1) // 2
            de = dl = 0
            for i, m in enumerate(ms):
                A(m)
                if i < ne:
                    want = (len(early) * (i + 1) + ne - 1) // ne
                    while de < want:
                        for x in early[de]:
                            A(x)
                        de += 1
                if i >= ne - 1:
                    want = (len(late) * (i - ne + 2) + (n - ne + 1) - 1) // (n - ne + 1)
                    while dl < min(want, len(late)):
                        for x in late[dl]:
                            A(x)
                        dl += 1
                if fill['q']:
                    k = (len(fill['q']) + fill['slots'] - 1) // fill['slots']
                    for g in fill['q'][:k]:
                        for x in g:
                            A(x)
                    fill['q'] = fill['q'][k:]
                    fill['slots'] -= 1
            assert de == len(early) and dl == len(late)

        def half_stage(r, par, NP, nwait, barrier=True, nxt=True, do_dma=True, mid=None, first=False):
            A('s_waitcnt lgkmcnt(0)')
            interleave(mfmas(0, first), [[r] for r in reads(1, 1)])
            if barrier:
                if nwait is None:
                    A('s_waitcnt lgkmcnt(0)')
                else:
                    A(f's_waitcnt vmcnt({nwait}) lgkmcnt(0)')
                A('s_barrier')
            else:
                A('s_waitcnt lgkmcnt(0)')
            if mid:
                mid()
            gs, gl = [], []
            if nxt:
                for x in adv_rd(par) + rd_ptr(1 - par):
                    A(x)
                gs += [[r] for r in reads(0, 0)]
            if do_dma:
                gl += dma(NP) + [adv_wr(r, par)]
            interleave(mfmas(1), gs, gl)

        SR, SNM, SCS = ST + 48, ST + 50, ST + 52
        NMF, CSF = ST + 16, ST + 24

        def stat_loads():
            A(f'v_lshlrev_b32 v{V_T}, 2, v{V_L31}')
            A(f'v_mul_u32_u24 v{V_T + 2}, {CSH}, v{V_HF}')
            if TR:
                A('s_lshl_b32 s42, s54, 6'); A('s_add_u32 s42, s42, s35'); A('s_lshl_b32 s42, s42, 2')
                A(f's_add_u32 s42, s42, {OFF_RS}'); A('s_add_u32 s43, s42, 8192')
                for xt in range(2):
                    A(f'buffer_load_dword v{SR + xt}, v{V_T}, s[20:23], s42 offen offset:{128 * xt} sc1')
                    A(f'buffer_load_dword v{SNM + xt}, v{V_T}, s[20:23], s43 offen offset:{128 * xt} sc1')
                if pn == 'gu':
                    A(f'v_and_b32 v{V_T + 1}, 15, v{V_LANE}')
                    A(f'v_lshl_add_u32 v{V_T + 2}, v{V_T + 1}, 2, v{V_T + 2}')
                    A(f'v_bfe_u32 v{V_T + 1}, v{V_LANE}, 4, 1')
                    A(f'v_mul_u32_u24 v{V_T + 1}, {1728 * 4}, v{V_T + 1}')
                    A(f'v_add_u32 v{V_T + 2}, v{V_T + 1}, v{V_T + 2}')
                    A('s_mul_i32 s42, s36, 384'); A('s_mul_i32 s43, s55, 192'); A('s_add_u32 s42, s42, s43')
                    A(f's_add_u32 s42, s42, {OFF_CS + 1920 * 4}')
                    for t in range(3):
                        A(f'buffer_load_dword v{SCS + t}, v{V_T + 2}, s[20:23], s42 offen offset:{64 * t} sc1')
                else:
                    A(f'v_add_u32 v{V_T + 2}, v{V_T}, v{V_T + 2}')
                    A('s_lshl_b32 s42, s36, 9'); A('s_lshl_b32 s43, s55, 8'); A('s_add_u32 s42, s42, s43')
                    A(f's_add_u32 s42, s42, {OFF_CS}')
                    for t in range(2):
                        A(f'buffer_load_dword v{SCS + t}, v{V_T + 2}, s[20:23], s42 offen offset:{128 * t} sc1')
            else:
                A('s_lshl_b32 s42, s54, 5'); A('s_add_u32 s42, s42, s35'); A('s_lshl_b32 s42, s42, 2')
                A(f's_add_u32 s42, s42, {OFF_RS}'); A('s_add_u32 s43, s42, 8192')
                A(f'v_lshlrev_b32 v{V_T + 1}, 4, v{V_HF}')
                A(f'v_add_u32 v{V_T + 2}, v{V_T}, v{V_T + 2}')
                A(f'buffer_load_dword v{SNM}, v{V_T}, s[20:23], s43 offen sc1')
                for j in range(4):
                    A(f'buffer_load_dwordx4 v[{ST + 4 * j}:{ST + 4 * j + 3}], v{V_T + 1}, s[20:23], s42 offen offset:{32 * j} sc1')
                A('s_mul_i32 s42, s36, 640'); A('s_mul_i32 s43, s55, 2560'); A('s_add_u32 s42, s42, s43')
                A(f's_add_u32 s42, s42, {OFF_CS + 640 * 4}')
                for t in range(5):
                    A(f'buffer_load_dword v{SCS + t}, v{V_T + 2}, s[20:23], s42 offen offset:{128 * t} sc1')

        def flag_load():
            A(f'v_lshlrev_b32 v{V_T + 3}, 2, v{V_LANE}')
            A(f'buffer_load_dword v{V_FLG}, v{V_T + 3}, s[64:67], 0 offen sc1')

        def flag_test():
            A(f'v_cmp_ne_u32 vcc, 0x01010101, v{V_FLG}')
            A('s_nop 4')
            A('s_cmp_eq_u64 vcc, 0')

        def flag_check():
            no = newl('fno')
            A('s_mov_b32 s59, 0')
            flag_test()
            A(f's_cbranch_scc0 {no}')
            A('s_mov_b32 s59, 0x7fffffff')
            stat_loads()
            A.flush(6)
            A.label(no)
            if pn == 'q':
                wd_loads()

        def flag_slow():
            ok, again = newl('fok'), newl('fag')
            A('s_cmp_lg_u32 s59, 0')
            A(f's_cbranch_scc1 {ok}')
            A.label(again)
            A('s_sleep 24')
            flag_load()
            A('s_add_u32 s59, s59, 1')
            A('s_waitcnt vmcnt(0)')
            flag_test()
            A('s_cselect_b32 s59, 0x7fffffff, s59')
            A('s_cmp_lt_u32 s59, 0x8000')
            A(f's_cbranch_scc1 {again}')
            stat_loads()
            A.flush(6)
            A.label(ok)

        def split3(src, d, side):
            t0, t1 = TMP, TMP + 1
            A(f'v_and_b32 v{t0}, s48, v{src}')
            A(f'v_sub_f32 v{t0}, v{src}, v{t0}')
            A(f'v_and_b32 v{t1}, s48, v{t0}')
            A(f'v_sub_f32 v{t1}, v{t0}, v{t1}')
            if side == 0:
                A(f'v_perm_b32 v{d}, v{src}, v{src}, s49')
                A(f'v_perm_b32 v{d + 1}, v{t0}, v{t0}, s49')
                A(f'v_perm_b32 v{d + 2}, v{t1}, v{src}, s49')
            else:
                A(f'v_perm_b32 v{d}, v{t0}, v{src}, s49')
                A(f'v_perm_b32 v{d + 1}, v{t0}, v{src}, s49')
                A(f'v_perm_b32 v{d + 2}, v{src}, v{t1}, s49')
            A(f'v_mov_b32 v{d + 3}, 0')

        def rank1():
            A('s_mov_b32 s48, 0xffff0000'); A('s_mov_b32 s49, 0x07060302')
            for xt in range(NX):
                split3(SNM + xt, NMF + 4 * xt, 1)
            for t in range(NW):
                split3(SCS + t, CSF + 4 * t, 0)
                for xt in range(NX):
                    a = AC(xt, t)
                    c, n = f'v[{CSF + 4 * t}:{CSF + 4 * t + 3}]', f'v[{NMF + 4 * xt}:{NMF + 4 * xt + 3}]'
                    if TR:
                        A(f'v_mfma_f32_32x32x16_bf16 v[{a}:{a + 15}], {c}, {n}, v[{a}:{a + 15}]')
                    else:
                        A(f'v_mfma_f32_32x32x16_bf16 v[{a}:{a + 15}], {n}, {c}, v[{a}:{a + 15}]')

        def role(r):
            NP = P['NPX'] if r == 'x' else P['NPW']
            if r == 'x':
                A('s_mov_b32 s16, s24'); A('s_mov_b32 s17, s25'); A('s_mov_b32 s18, s26'); A('s_mov_b32 s19, s27')
                A(f'v_lshrrev_b32 v{V_T}, 3, v{V_LANE}')
                A(f'v_mul_u32_u24 v{V_T}, 1280, v{V_T}')
                A(f'v_lshrrev_b32 v{V_T + 1}, 4, v{V_LANE}')
                A(f'v_and_b32 v{V_T + 2}, 7, v{V_LANE}')
                A(f'v_xor_b32 v{V_T + 1}, v{V_T + 1}, v{V_T + 2}')
                A(f'v_lshl_add_u32 v{VP}, v{V_T + 1}, 4, v{V_T}')
                A(f'v_xor_b32 v{VP + 1}, 64, v{VP}')
                A(f'v_add_u32 v{VP + 1}, {8 * 1280}, v{VP + 1}')
                for p in range(2, NP):
                    A(f'v_add_u32 v{VP + p}, {16 * 1280}, v{VP + p - 2}')
                A(f's_lshl_b32 s42, s32, {6 if NX == 2 else 5}'); A('s_add_u32 s42, s42, s35')
                A('s_mul_i32 s37, s42, 1280')
                A(f's_lshl_b32 s46, s32, {13 if NX == 2 else 12}')
                A(f's_add_u32 s56, s46, {3 * XS}')
            else:
                A.label(f'{name}_{pn}_w')
                A('s_and_b32 s42, s32, 1')
                A('s_bfe_u32 s43, s32, 0x10001')
                if pn == 'gu':
                    A('s_cmp_eq_u32 s43, 0')
                    A('s_cselect_b32 s16, s8, s10'); A('s_cselect_b32 s17, s9, s11')
                    A('s_mul_i32 s37, s36, 192')
                    A('s_mul_i32 s50, s42, 3')
                    A(f's_mul_i32 s46, s43, {UPOFF}'); A('s_mul_i32 s42, s42, 3072'); A('s_add_u32 s46, s46, s42')
                elif pn == 'q':
                    A('s_mov_b32 s16, s6'); A('s_mov_b32 s17, s7')
                    A('s_lshl_b32 s37, s36, 8')
                    A('s_lshl_b32 s50, s54, 1')
                    A('s_lshl_b32 s46, s54, 11')
                else:
                    A('s_mov_b32 s16, s6'); A('s_mov_b32 s17, s7')
                    A('s_mul_i32 s37, s36, 320'); A('s_mul_i32 s46, s43, 1280'); A('s_add_u32 s37, s37, s46')
                    A('s_add_u32 s37, s37, 1280')
                    A('s_mul_i32 s50, s42, 5')
                    A('s_mul_i32 s46, s43, 10240'); A('s_mul_i32 s42, s42, 5120'); A('s_add_u32 s46, s46, s42')
                A(f's_add_u32 s46, s46, {XB}')
                A(f's_mov_b32 s18, {640 * STRIDE}'); A('s_mov_b32 s19, 0x20000')
                A(f's_mov_b32 s38, {32 * STRIDE}')
                A(f's_add_u32 s56, s46, {NSLOT * WS}')
                A('s_lshl_b32 s50, s50, 6')
                magic, sh = {12: (43691, 19), 16: (1, 4), 20: (52429, 20)}[RG]
                A(f's_mov_b32 s42, {magic}'); A(f's_mov_b32 s43, {STRIDE}')
                for p in range(NP):
                    g, k, t = V_T, V_T + 1, V_T + 2
                    A(f'v_add_u32 v{g}, s50, v{V_LANE}')
                    if p:
                        A(f'v_add_u32 v{g}, {64 * p}, v{g}')
                    A(f'v_mul_u32_u24 v{k}, s42, v{g}')
                    A(f'v_lshrrev_b32 v{k}, {sh}, v{k}')
                    A(f'v_mul_u32_u24 v{t}, {RG}, v{k}')
                    A(f'v_sub_u32 v{g}, v{g}, v{t}')
                    if pn == 'q':
                        A(f'v_lshrrev_b32 v{t}, 2, v{g}')
                        A(f'v_sub_u32 v{t}, v{t}, v{k}')
                        A(f'v_and_b32 v{t}, 3, v{t}')
                        A(f'v_and_b32 v{g}, 3, v{g}')
                        A(f'v_lshl_add_u32 v{g}, v{t}, 2, v{g}')
                    A(f'v_mul_u32_u24 v{k}, s43, v{k}')
                    A(f'v_lshl_add_u32 v{VP + p}, v{g}, 4, v{k}')
            A('s_mov_b32 s40, s46')
            A('s_nop 4')
            for h in range(4):
                for g in dma(NP) + [adv_wr(r, h & 1)]:
                    for x in g:
                        A(x)
                if h == 1:
                    A('s_barrier')
            later = 3 * NP if r == 'w' else 2 * NP
            stamp(A, 1)
            stats_setup()
            rd_setup()
            stamp(A)
            A('s_mov_b32 s39, 0')
            A('s_mov_b32 s61, 0')
            for x in rd_ptr(0):
                A(x)
            A(f's_waitcnt vmcnt({later}) lgkmcnt(0)')
            A('s_barrier')
            stamp(A)
            for x in reads(0, 0):
                A(x)
            fill['q'] = stats_loads()
            fill['slots'] = NX * NW
            S = len(fill['q'])
            A('s_movk_i32 s41, 4')
            nw = (lambda par: 2 * NP) if r == 'w' else (lambda par: NP if par else None)

            def pub():
                if r != 'w':
                    return
                l = newl('np')
                A('s_cmp_lg_u32 s41, s60')
                A(f's_cbranch_scc1 {l}')
                publish()
                A.flush(4)
                A.label(l)

            def start_fill():
                fill['q'] = stats_compute()
                fill['slots'] = 5 * NX * NW
            for h in range(8):
                w = nw(h & 1)
                if w is not None and h < 3:
                    w += S
                mid = None
                if h == 3:
                    mid = start_fill
                if h == 6:
                    assert not fill['q']
                    if r == 'w':
                        mid = cs_phase2
                half_stage(r, h & 1, NP, w, mid=mid, first=(h == 0))
                if h == 3:
                    stamp(A)
            stamp(A)
            A.flush()
            lp = newl('loop')
            A.label(lp)
            half_stage(r, 0, NP, nw(0), mid=pub)
            half_stage(r, 1, NP, nw(1))
            A('s_sub_u32 s41, s41, 1')
            A('s_cmp_lg_u32 s41, 0')
            A.flush()
            A(f's_cbranch_scc1 {lp}')
            stamp(A)

            def m16():
                flag_load()
                if r == 'x':
                    zero_k2_flags()
            half_stage(r, 0, NP, nw(0), do_dma=False, mid=m16)
            half_stage(r, 1, NP, 0, do_dma=False, mid=flag_check)
            half_stage(r, 0, NP, None, barrier=False, do_dma=False)
            half_stage(r, 1, NP, None, barrier=False, nxt=False, do_dma=False)
            stamp(A)
            A.flush()
            if r == 'x':
                A(f's_branch {name}_{pn}_epi')
        role('x')
        role('w')
        A.label(f'{name}_{pn}_epi')

        if pn == 'q':
            A('s_waitcnt vmcnt(0)')
            wd_stores()
        flag_slow()
        if TR:
            ostr = 3456 if pn == 'gu' else 1280
            A('s_lshl_b32 s42, s54, 6'); A('s_add_u32 s42, s42, s35')
            A(f'v_add_u32 v{V_T}, s42, v{V_L31}')
            A(f's_movk_i32 s43, {ostr}')
            A(f'v_mul_lo_u32 v{V_OUT}, v{V_T}, s43')
            A(f'v_lshl_add_u32 v{V_OUT}, v{V_HF}, 4, v{V_OUT}')
        if pn == 'gu':
            A('s_mul_i32 s42, s36, 192'); A('s_mul_i32 s43, s55, 96'); A('s_add_u32 s42, s42, s43')
            A(f's_add_u32 s42, s42, {OFF_H}'); A(f's_add_u32 s43, s42, {32 * 3456}')
            A(f's_mov_b32 s47, {NLOG2E}')
            A('s_waitcnt vmcnt(0)')
            stamp(A)
            rank1()
            C1, RI = ST, ST + 2
            for xt in range(2):
                A(f'v_mul_f32 v{C1 + xt}, s47, v{SR + xt}')
                A(f'v_rcp_f32 v{RI + xt}, v{SR + xt}')
            for t in range(3):
                for xt in range(2):
                    a = AC(xt, t)
                    for i in range(8):
                        A(f'v_mul_f32 v{a + i}, v{C1 + xt}, v{a + i}')
                    for i in range(8):
                        A(f'v_exp_f32 v{a + i}, v{a + i}')
                    for i in range(8):
                        A(f'v_fma_f32 v{a + i}, v{a + i}, v{RI + xt}, v{RI + xt}')
                    for i in range(8):
                        A(f'v_rcp_f32 v{a + i}, v{a + i}')
                    for i in range(8):
                        A(f'v_mul_f32 v{a + 8 + i}, v{a + i}, v{a + 8 + i}')
                    for j in range(4):
                        A(f'v_cvt_pk_bf16_f32 v{a + j}, v{a + 8 + 2 * j}, v{a + 9 + 2 * j}')
                    A(f'v_permlane32_swap_b32 v{a}, v{a + 2}')
                    A(f'v_permlane32_swap_b32 v{a + 1}, v{a + 3}')
                    A(f'buffer_store_dwordx4 v[{a}:{a + 3}], v{V_OUT}, s[20:23], {"s43" if xt else "s42"} offen offset:{32 * t}')
            stamp_dump(A)
            A('s_endpgm')
        elif pn == 'q':
            A('s_lshl_b32 s42, s36, 8'); A('s_lshl_b32 s43, s55, 7'); A('s_add_u32 s42, s42, s43')
            A(f's_add_u32 s57, s42, {OFF_PQ}'); A(f's_add_u32 s58, s57, {32 * 1280}')
            A(f's_waitcnt vmcnt(0)')
            rank1()
            C1 = ST
            for xt in range(2):
                A(f'v_mul_f32 v{C1 + xt}, s44, v{SR + xt}')
            for t in range(2):
                for xt in range(2):
                    a = AC(xt, t)
                    ops = [phi2_ops(a + i, TMP + i, C1 + xt, SR + xt) for i in range(16)]
                    for k in range(6):
                        for i in range(16):
                            A(ops[i][k])
                    for j in range(8):
                        A(f'v_cvt_pk_bf16_f32 v{a + j}, v{a + 2 * j}, v{a + 2 * j + 1}')
                    for pr in range(2):
                        A(f'v_permlane32_swap_b32 v{a + 4 * pr}, v{a + 4 * pr + 2}')
                        A(f'v_permlane32_swap_b32 v{a + 4 * pr + 1}, v{a + 4 * pr + 3}')
                    for pr in range(2):
                        A(f'buffer_store_dwordx4 v[{a + 4 * pr}:{a + 4 * pr + 3}], v{V_OUT}, s[20:23], {"s58" if xt else "s57"} offen offset:{64 * t + 32 * pr}')
            stamp_dump(A)
            A('s_endpgm')
        else:
            EXV = 40960
            A(f'v_lshlrev_b32 v{V_OUT}, 4, v{V_LANE}')
            A('s_lshl_b32 s42, s54, 11'); A(f's_mul_i32 s43, s55, {EXV}'); A('s_add_u32 s42, s42, s43')
            A(f'v_add_u32 v{V_FLG}, s42, v{V_OUT}')
            A('s_waitcnt vmcnt(0)')
            A('s_barrier')
            rank1()
            R, C = ST, ACC + 80
            lv, lj = newl('isv'), newl('kvj')
            A('s_cmp_lg_u32 s55, 0')
            A(f's_cbranch_scc1 {lv}')
            for i in range(16):
                A(f'v_mul_f32 v{C + i}, s44, v{R + i}')
            for t in range(5):
                a = AC(0, t)
                ops = [phi2_ops(a + i, TMP + i, C + i, R + i) for i in range(16)]
                for k in range(6):
                    for i in range(16):
                        A(ops[i][k])
            A.flush(4)
            A(f's_branch {lj}')
            A.label(lv)
            A.flush(12)
            for t in range(5):
                a = AC(0, t)
                for i in range(16):
                    A(f'v_mul_f32 v{a + i}, v{R + i}, v{a + i}')
            A.flush(4)
            A.label(lj)
            for t in range(5):
                a = AC(0, t)
                for j in range(8):
                    A(f'v_cvt_pk_bf16_f32 v{a + j}, v{a + 2 * j}, v{a + 2 * j + 1}')
                A(f'ds_write_b128 v{V_FLG}, v[{a}:{a + 3}] offset:{8192 * t}')
                A(f'ds_write_b128 v{V_FLG}, v[{a + 4}:{a + 7}] offset:{8192 * t + 1024}')
            VKV = ST
            A('s_movk_i32 s48, 3277')
            A('s_movk_i32 s49, 320')
            for cv in range(5):
                t = V_T
                A(f'v_add_u32 v{t}, {32 * cv}, v{V_L31}')
                A(f'v_mul_lo_u32 v{t + 1}, v{t}, s48')
                A(f'v_lshrrev_b32 v{t + 1}, 16, v{t + 1}')
                A(f'v_mul_u32_u24 v{t + 1}, 20, v{t + 1}')
                A(f'v_sub_u32 v{t}, v{t}, v{t + 1}')
                A(f'v_lshlrev_b32 v{t}, 2, v{t}')
                A(f'v_mul_lo_u32 v{t + 1}, v{V_HF}, s49')
                A(f'v_add_u32 v{VKV + cv}, v{t}, v{t + 1}')
            ON = ST + 8
            for j in range(4):
                A(f'v_mov_b32 v{ON + j}, 0x3f803f80')
            A('s_lshl_b32 s57, s53, 5'); A('s_lshl_b32 s42, s36, 3'); A('s_add_u32 s57, s57, s42')
            A('s_mul_i32 s57, s57, 1600'); A(f's_add_u32 s57, s57, {OFF_KVP}')
            A('s_mul_i32 s58, s53, 2560'); A('s_mul_i32 s42, s36, 640'); A('s_add_u32 s58, s58, s42')
            A(f's_add_u32 s58, s58, {OFF_ZP}')
            A('s_waitcnt lgkmcnt(0)')
            A('s_barrier')
            JA, JB, D2 = ACC, ACC + 32, ACC + 64

            def job_block(ck, cv):
                for u in range(4):
                    for h in range(2):
                        A(f'ds_read_b128 v[{JA + 8 * u + 4 * h}:{JA + 8 * u + 4 * h + 3}], v{V_OUT} offset:{ck * 8192 + u * 2048 + h * 1024}')
                        if cv is not None:
                            A(f'ds_read_b128 v[{JB + 8 * u + 4 * h}:{JB + 8 * u + 4 * h + 3}], v{V_FLG} offset:{cv * 8192 + u * 2048 + h * 1024}')
                n = 0
                per = 2 if cv is not None else 1
                for u in range(4):
                    for h in range(2):
                        n += 1
                        A(f's_waitcnt lgkmcnt({per * (8 - n)})')
                        b = f'v[{JB + 8 * u + 4 * h}:{JB + 8 * u + 4 * h + 3}]' if cv is not None else f'v[{ON}:{ON + 3}]'
                        c = '0' if n == 1 else f'v[{D2}:{D2 + 15}]'
                        A(f'v_mfma_f32_32x32x16_bf16 v[{D2}:{D2 + 15}], v[{JA + 8 * u + 4 * h}:{JA + 8 * u + 4 * h + 3}], {b}, {c}')
                if cv is None:
                    A(f'v_lshlrev_b32 v{V_T}, 4, v{V_HF}')
                    A(f's_add_u32 s42, s58, {128 * ck}')
                    A('s_mov_b32 exec_lo, 1'); A('s_mov_b32 exec_hi, 1')
                    for q in range(4):
                        A(f'buffer_store_dwordx4 v[{D2 + 4 * q}:{D2 + 4 * q + 3}], v{V_T}, s[20:23], s42 offen offset:{32 * q}')
                    A('s_mov_b64 exec, -1')
                    return
                A(f's_add_u32 s42, s57, {32 * ck * 80}')
                for i in range(16):
                    masks = []
                    for hf in range(2):
                        nk = 32 * ck + 8 * (i >> 2) + 4 * hf + (i & 3)
                        m = 0
                        for l in range(32):
                            if (32 * cv + l) // 20 == nk // 20:
                                m |= 1 << l
                        masks.append(m)
                    if not (masks[0] or masks[1]):
                        continue
                    A(f's_mov_b32 exec_lo, 0x{masks[0]:x}')
                    A(f's_mov_b32 exec_hi, 0x{masks[1]:x}')
                    A(f'buffer_store_dword v{D2 + i}, v{VKV + cv}, s[20:23], s42 offen offset:{(8 * (i >> 2) + (i & 3)) * 80}')
                A('s_mov_b64 exec, -1')
            A(f'v_add_u32 v{V_FLG}, {EXV}, v{V_OUT}')
            full = [(c, c) for c in range(5)] + [(c - 1, c) for c in range(1, 5)] + [(c, c - 1) for c in range(1, 5)]
            zs = [(c, None) for c in range(5)]
            assign = [[] for _ in range(8)]
            for i, j in enumerate(full[:10]):
                assign[i % 5].append(j)
            for i, j in enumerate(full[10:]):
                assign[5 + i].append(j)
            for i, j in enumerate(zs):
                assign[5 + (i % 3)].append(j)
            for w in range(8):
                nl = newl('jw')
                if w < 7:
                    A(f's_cmp_lg_u32 s32, {w}')
                    A(f's_cbranch_scc1 {nl}')
                for j in assign[w]:
                    job_block(*j)
                    A.flush()
                sv = _sn[0]
                stamp_dump(A)
                _sn[0] = sv
                A('s_endpgm')
                if w < 7:
                    A.label(nl)

    for pn in ('gu', 'q', 'kv'):
        gen_path(pn)
    A.label(f'{name}_end')
    A('s_endpgm')
```

```python
import sys
from asmlib import Asm
from layout import *
import k1p as k1
import k2c as k2

NAME = "recurrent_scan__linear_attn_block__glu_gated_glu__prompt"
hdr = open(f"cdna_kernels/{NAME}.s.ref").read().split("; Override launch geometry")[0]

def kd(name, vgpr, accum, sgpr=102):
    return f""".p2align 6
.amdhsa_kernel {name}
  .amdhsa_next_free_vgpr {vgpr}
  .amdhsa_next_free_sgpr {sgpr}
  .amdhsa_accum_offset {accum}
  .amdhsa_group_segment_fixed_size 0
  .amdhsa_kernarg_size 80
  .amdhsa_user_sgpr_count 2
  .amdhsa_user_sgpr_kernarg_segment_ptr 1
  .amdhsa_system_sgpr_workgroup_id_x 1
.end_amdhsa_kernel
"""

A = Asm()
k1.gen_k1(A, "k1_kernel")
A3 = Asm()
k2.gen_k2(A3, "k2_kernel")
out = hdr
out += f"; @launch kernel=k1_kernel grid=(256,1,1) block=({k1.K1_BLOCK},1,1) lds={k1.K1_LDS}\n"
out += f"; @launch kernel=k2_kernel grid=(256,1,1) block=(256,1,1) lds={k2.K2_LDS}\n"
out += '.amdgcn_target "amdgcn-amd-amdhsa--gfx950"\n.text\n'
out += A.text() + A3.text()
out += '.section .rodata,"a"\n'
out += kd("k1_kernel", k1.K1_VGPR + k1.K1_AGPR, k1.K1_VGPR)
out += kd("k2_kernel", k2.K2_VGPR + k2.K2_AGPR, k2.K2_VGPR)
dst = sys.argv[1]
open(dst, "w").write(out)
print("nops:", A.nops, A3.nops, "bytes", len(out))
```

```python
from asmlib import Asm
from layout import *
import os
FL = os.environ.get('K1FLAGS', '').split(',')

LOG2E = 0x3fb8aa3b
NLOG2E = 0xbfb8aa3b
EPS6 = 0x358637bd
EPS5 = 0x3727c5ac
NSLOT = 5
XTRA = 160064
K1_LDS = XTRA + 2048
K1_BLOCK = 512

V_LANE, V_L31, V_HF = 1, 2, 3
VP = 4
VXA = 28
VWA = 11
VXC = 13
VWC = 15
V_OUT = 17
V_FLG = 18
V_T = 19
ACC = 32
ST = 128
TMP = 192
K1_VGPR = 208
K1_AGPR = 48
UPOFF = 6144 + 32

PATHS = {
    'gu': dict(NX=2, NW=3, tr=True, RG=12, stride=3456, NPX=4, NPW=3, XS=32768, WS=12352),
    'q': dict(NX=2, NW=2, tr=True, RG=16, stride=3840, NPX=4, NPW=2, XS=32768, WS=8192),
    'kv': dict(NX=1, NW=5, tr=False, RG=20, stride=3840, NPX=2, NPW=5, XS=16384, WS=20480),
}


STAMP = 'stamp' in FL
WT = ' sc1' if 'wt' in FL else ''
WTD = ' sc1' if 'wtd' in FL else ''
EARLY = 'early' in FL
BLK = 'blk' in FL
_sn = [0]


def stamp(A, reset=None):
    if not STAMP:
        return
    if reset is not None:
        _sn[0] = reset
    i = _sn[0]
    _sn[0] += 1
    A(f's_memtime s[{72 + 2 * i}:{73 + 2 * i}]')


def stamp_dump(A):
    if not STAMP:
        return
    stamp(A)
    n = _sn[0]
    A('s_waitcnt lgkmcnt(0)')
    A('s_lshl_b32 s42, s2, 3'); A('s_add_u32 s42, s42, s32'); A('s_lshl_b32 s42, s42, 9')
    A(f's_add_u32 s42, s42, {16 << 20}')
    A(f's_mov_b32 s22, {32 << 20}')
    A('s_mov_b64 exec, 1')
    for i in range(n):
        A(f'v_mov_b32 v{V_T + 1}, s{72 + 2 * i}'); A(f'v_mov_b32 v{V_T + 2}, s{73 + 2 * i}')
        A(f'buffer_store_dwordx2 v[{V_T + 1}:{V_T + 2}], off, s[20:23], s42 offset:{8 * i}')
        A('s_nop 2')
    A('s_mov_b64 exec, -1')


def phi_ops(dst, src, t1):
    return [f'v_mul_f32 v{t1}, s44, v{src}',
            f'v_min_f32 v{t1}, 0, v{t1}',
            f'v_exp_f32 v{t1}, v{t1}',
            f'v_max_f32 v{dst}, 0, v{src}',
            f'v_add_f32 v{dst}, v{dst}, v{t1}',
            f'v_add_f32 v{dst}, s45, v{dst}']


def phi2_ops(a, t, C, R):
    return [f'v_min_f32 v{t}, 0, v{a}',
            f'v_mul_f32 v{t}, v{C}, v{t}',
            f'v_exp_f32 v{t}, v{t}',
            f'v_max_f32 v{a}, 0, v{a}',
            f'v_fma_f32 v{a}, v{R}, v{a}, s45',
            f'v_add_f32 v{a}, v{a}, v{t}']


def allred(regs, rors, t):
    o = []
    for r in rors:
        for x in regs:
            o.append(f'v_add_f32_dpp v{x}, v{x}, v{x} row_ror:{r} row_mask:0xf bank_mask:0xf')
    for sw in ('v_permlane16_swap_b32', 'v_permlane32_swap_b32'):
        for i, x in enumerate(regs):
            o.append(f'v_mov_b32 v{t + i}, v{x}')
        for i, x in enumerate(regs):
            o.append(f'{sw} v{x}, v{t + i}')
        for i, x in enumerate(regs):
            o.append(f'v_add_f32 v{x}, v{x}, v{t + i}')
    return o


CST = []
for b1, n1, b2, n2, b3, n3 in zip([30, 36, 42, 48, 54, 4, 13, 17], [6, 6, 6, 6, 3, 6, 4, 3],
                                  [57, 63, 69, 75, 81, 10, 23, 27], [6, 6, 6, 6, 3, 3, 4, 3],
                                  [12, 12, 12, 12, 0, 20, 8, 6], [0, 0, 0, 0, 4, 3, 0, 0]):
    CST.append(b1 | (n1 << 7) | ((b2 - n1) << 10) | ((n1 + n2) << 17) | ((b3 - n1 - n2 + 8) << 21) | ((n1 + n2 + n3) << 26))
CSH = 5376 * 4


def gen_k1(A, name):
    A.raw(f'.globl {name}')
    A.raw('.p2align 8')
    A.raw(f'.type {name},@function')
    A.label(name)
    A('s_cmp_ge_u32 s2, 256')
    A(f's_cbranch_scc1 {name}_end')
    stamp(A, 0)
    A('s_load_dwordx4 s[4:7], s[0:1], 0')
    A('s_load_dwordx4 s[8:11], s[0:1], 32')
    A('s_load_dwordx2 s[14:15], s[0:1], 48')
    A('s_load_dwordx4 s[64:67], s[0:1], 64')
    A(f'v_and_b32 v{V_LANE}, 63, v0')
    A(f'v_lshrrev_b32 v{V_T}, 6, v0')
    A(f'v_and_b32 v{V_L31}, 31, v0')
    A(f'v_readfirstlane_b32 s32, v{V_T}')
    A(f'v_bfe_u32 v{V_HF}, v0, 5, 1')
    A('s_and_b32 s42, s2, 7')
    A('s_lshr_b32 s43, s2, 3')
    A('s_and_b32 s34, s43, 7')
    A('s_lshr_b32 s43, s43, 3')
    A('s_lshl_b32 s33, s42, 2')
    A('s_add_u32 s33, s33, s43')
    A(f'v_lshlrev_b32 v{V_T}, 2, v{V_LANE}')
    A('s_lshl_b32 s49, s2, 3')
    A('s_add_u32 s49, s49, s32')
    A('s_mul_i32 s48, s49, 1280')
    A('s_waitcnt lgkmcnt(0)')
    A('s_mov_b32 s24, s4'); A('s_and_b32 s25, s5, 0xffff'); A(f's_mov_b32 s26, {2048 * 1280}'); A('s_mov_b32 s27, 0x20000')
    A('s_mov_b32 s20, s66'); A('s_and_b32 s21, s67, 0xffff'); A(f's_mov_b32 s22, {WS_END}'); A('s_mov_b32 s23, 0x20000')
    A('s_and_b32 s7, s7, 0xffff'); A('s_and_b32 s9, s9, 0xffff'); A('s_and_b32 s11, s11, 0xffff')
    RSL = ST
    CSL = ST + 8
    CSA = ST + 32
    A(f's_mov_b32 s44, {LOG2E}'); A(f's_mov_b32 s45, {EPS6}')
    A('s_and_b32 s65, s65, 0xffff'); A('s_movk_i32 s66, 256'); A('s_mov_b32 s67, 0x20000')
    A('s_cmp_eq_u32 s32, 7')
    A('s_cselect_b32 s60, 4, -1')
    A('s_cmp_lt_u32 s33, 18')
    A(f's_cbranch_scc1 {name}_gu')
    A('s_cmp_lt_u32 s33, 23')
    A(f's_cbranch_scc1 {name}_q')
    A('s_cmp_lt_u32 s33, 31')
    A(f's_cbranch_scc1 {name}_kv')
    lbl = [0]

    def newl(s):
        lbl[0] += 1
        return f'{name}_{s}{lbl[0]}'

    def stats_setup():
        A('s_and_b32 s42, s2, 7')
        A(f's_mov_b32 s43, {CST[0]}')
        for j in range(1, 8):
            A(f's_cmp_eq_u32 s42, {j}')
            A(f's_cselect_b32 s43, {CST[j]}, s43')
        A('s_lshr_b32 s42, s2, 4')
        A('s_bfe_u32 s50, s43, 0x50015')
        A('s_sub_u32 s50, s50, 8')
        A('s_bfe_u32 s52, s43, 0x40011')
        A('s_bfe_u32 s47, s43, 0x7000a')
        A('s_cmp_lt_u32 s42, s52')
        A('s_cselect_b32 s50, s47, s50')
        A('s_bfe_u32 s52, s43, 0x30007')
        A('s_and_b32 s47, s43, 127')
        A('s_cmp_lt_u32 s42, s52')
        A('s_cselect_b32 s50, s47, s50')
        A('s_add_u32 s50, s50, s42')
        A('s_bfe_u32 s52, s43, 0x4001a')
        A('s_cmp_lt_u32 s42, s52')
        A('s_cselect_b32 s63, 1, 0')
        A('s_cselect_b32 s50, s50, 0')
        A('s_bfe_u32 s52, s2, 0x10003')
        A(f's_mul_i32 s62, s52, {CSH}')
        A('s_lshl_b32 s42, s50, 8')
        A('s_add_u32 s62, s62, s42')
        A(f's_add_u32 s62, s62, {OFF_CS}')
        A('s_sub_u32 s42, s50, 30'); A('s_sub_u32 s43, s50, 57')
        A('s_cmp_lt_u32 s50, 57')
        A('s_cselect_b32 s28, s8, s10'); A('s_cselect_b32 s29, s9, s11'); A('s_cselect_b32 s42, s42, s43')
        A('s_cmp_lt_u32 s50, 30')
        A('s_cselect_b32 s28, s6, s28'); A('s_cselect_b32 s29, s7, s29'); A('s_cselect_b32 s42, s50, s42')
        A('s_mov_b32 s43, 3456'); A('s_cselect_b32 s43, 3840, s43')
        A('s_mul_i32 s30, s43, 640'); A('s_mul_i32 s30, s30, s63'); A('s_mov_b32 s31, 0x20000')
        A('s_lshl_b32 s68, s42, 7')
        A('s_mul_i32 s50, s32, 40'); A('s_mul_i32 s52, s52, 320'); A('s_add_u32 s50, s50, s52')
        A(f'v_lshrrev_b32 v{V_T + 7}, 3, v{V_LANE}')
        A(f'v_add_u32 v{V_T + 7}, s50, v{V_T + 7}')
        A(f'v_mul_lo_u32 v{V_T + 7}, v{V_T + 7}, s43')
        A(f'v_and_b32 v{V_T + 8}, 7, v{V_LANE}')
        A(f'v_lshl_add_u32 v{V_T + 7}, v{V_T + 8}, 4, v{V_T + 7}')
        A(f'v_lshlrev_b32 v{V_T + 8}, 2, v{V_LANE}')
        A('s_lshl_b32 s69, s43, 3')

    def stats_loads():
        g = []
        for i in range(5):
            g.append([f'buffer_load_dword v{RSL + i}, v{V_T + 8}, s[24:27], s48 offen offset:{256 * i}'])
        for p in range(5):
            g.append([f'buffer_load_dwordx4 v[{CSL + 4 * p}:{CSL + 4 * p + 3}], v{V_T + 7}, s[28:31], s68 offen',
                      's_add_u32 s68, s68, s69'])
        return g

    def stats_compute():
        o = []
        a0, a1 = V_T, V_T + 1
        o += ['s_mov_b32 s42, 0x00003f80', 's_mov_b32 s43, 0x3f800000', 's_mov_b32 s50, 0x3f803f80']
        for i in range(5):
            o.append(f'v_dot2_f32_bf16 v{a0}, v{RSL + i}, s50, {"0" if i == 0 else f"v{a0}"}')
            o.append(f'v_dot2_f32_bf16 v{a1}, v{RSL + i}, v{RSL + i}, {"0" if i == 0 else f"v{a1}"}')
        cs = []
        for p in range(5):
            for e in range(4):
                cs.append(f'v_dot2_f32_bf16 v{CSA + 2 * e}, v{CSL + 4 * p + e}, s42, {"0" if p == 0 else f"v{CSA + 2 * e}"}')
                cs.append(f'v_dot2_f32_bf16 v{CSA + 2 * e + 1}, v{CSL + 4 * p + e}, s43, {"0" if p == 0 else f"v{CSA + 2 * e + 1}"}')
        rw = allred([a0, a1], (8, 4, 2, 1), V_T + 4)
        rw += ['s_mov_b32 s50, 0x3acccccd',
               f'v_mul_f32 v{a0}, s50, v{a0}',
               f'v_mul_f32 v{a1}, s50, v{a1}',
               f'v_fma_f32 v{a1}, -v{a0}, v{a0}, v{a1}',
               f'v_max_f32 v{a1}, 0, v{a1}',
               f'v_add_f32 v{a1}, {EPS5}, v{a1}',
               f'v_rsq_f32 v{a1}, v{a1}',
               f'v_sub_f32 v{a0}, 0, v{a0}',
               's_lshl_b32 s50, s49, 2',
               f's_add_u32 s50, s50, {OFF_RS}',
               's_add_u32 s52, s50, 8192']
        k = 0
        for i, x in enumerate(rw):
            o.append(x)
            want = (len(cs) * (i + 1)) // len(rw)
            while k < want:
                o.append(cs[k]); k += 1
        g = [[x] for x in o]
        g.append(['s_mov_b64 exec, 1',
                  f'buffer_store_dword v{a1}, off, s[20:23], s50 sc1',
                  f'buffer_store_dword v{a0}, off, s[20:23], s52 sc1',
                  's_mov_b64 exec, -1'])
        o = allred([CSA + e for e in range(8)], (8,), CSA + 8)
        o += [f'v_and_b32 v{V_T}, 7, v{V_LANE}',
              f'v_lshlrev_b32 v{V_T}, 5, v{V_T}',
              's_lshl_b32 s42, s32, 8',
              f's_add_u32 s42, s42, {XTRA}',
              f'v_add_u32 v{V_T}, s42, v{V_T}',
              f'ds_write_b128 v{V_T}, v[{CSA}:{CSA + 3}]',
              f'ds_write_b128 v{V_T}, v[{CSA + 4}:{CSA + 7}] offset:16']
        g += [[x] for x in o]
        return g

    def cs_phase2():
        l = newl('nop2')
        A('s_cmp_lg_u32 s32, 7')
        A(f's_cbranch_scc1 {l}')
        A('s_cmp_eq_u32 s63, 0')
        A(f's_cbranch_scc1 {l}')
        A(f'v_add_u32 v{V_T + 1}, {XTRA}, v{V_T + 8}')
        for u in range(8):
            A(f'ds_read_b32 v{CSA + u}, v{V_T + 1} offset:{256 * u}')
        A('s_waitcnt lgkmcnt(0)')
        for u in range(1, 8):
            A(f'v_add_f32 v{CSA}, v{CSA}, v{CSA + u}')
        A(f'buffer_store_dword v{CSA}, v{V_T + 8}, s[20:23], s62 offen sc1')
        A.flush(4)
        A.label(l)

    WDR = ACC + 64

    def wd_loads():
        A('s_mov_b32 s28, s14'); A('s_and_b32 s29, s15, 0xffff'); A(f's_mov_b32 s30, {1728 * 1280}'); A('s_mov_b32 s31, 0x20000')
        A('s_mul_i32 s51, s51, 36')
        A('s_mul_i32 s42, s51, 1280')
        A(f'v_lshlrev_b32 v{V_T}, 4, v0')
        for i in range(6):
            A(f'buffer_load_dwordx4 v[{WDR + 4 * i}:{WDR + 4 * i + 3}], v{V_T}, s[28:31], s42 offen')
            if i < 5:
                A('s_add_u32 s42, s42, 8192')
        return 6

    def wd_stores():
        A('s_mul_i32 s52, s51, 160')
        A(f's_add_u32 s52, s52, {OFF_WD}')
        A('s_mov_b32 s42, 52429'); A('s_movk_i32 s43, 6554'); A(f's_mov_b32 s48, {1728 * 160}')
        for i in range(6):
            t = V_T
            A(f'v_add_u32 v{t}, {512 * i}, v0')
            A(f'v_mul_u32_u24 v{t + 1}, s42, v{t}')
            A(f'v_lshrrev_b32 v{t + 1}, 22, v{t + 1}')
            A(f'v_mul_u32_u24 v{t + 2}, 80, v{t + 1}')
            A(f'v_sub_u32 v{t}, v{t}, v{t + 2}')
            A(f'v_mul_u32_u24 v{t + 2}, s43, v{t}')
            A(f'v_lshrrev_b32 v{t + 2}, 16, v{t + 2}')
            A(f'v_mul_u32_u24 v{t + 3}, 10, v{t + 2}')
            A(f'v_sub_u32 v{t}, v{t}, v{t + 3}')
            A(f'v_mul_u32_u24 v{t + 2}, s48, v{t + 2}')
            A(f'v_mul_u32_u24 v{t + 1}, 160, v{t + 1}')
            A(f'v_lshl_add_u32 v{t}, v{t}, 4, v{t + 1}')
            A(f'v_add_u32 v{t + 4 + i}, v{t}, v{t + 2}')
        for i in range(6):
            if i == 5:
                A('v_cmp_gt_u32 vcc, 320, v0')
                A('s_and_saveexec_b64 s[70:71], vcc')
            A(f'buffer_store_dwordx4 v[{WDR + 4 * i}:{WDR + 4 * i + 3}], v{V_T + 4 + i}, s[20:23], s52 offen{WTD}')
        A('s_mov_b64 exec, -1')

    def zero_k2_flags():
        l = newl('nz')
        A('s_cmp_lg_u32 s2, 0')
        A(f's_cbranch_scc1 {l}')
        A('s_cmp_ge_u32 s32, 4')
        A(f's_cbranch_scc1 {l}')
        for i in range(4):
            A(f'v_mov_b32 v{TMP + i}, 0')
        A(f'v_lshlrev_b32 v{V_T}, 4, v0')
        A(f's_mov_b32 s42, {OFF_FLG}')
        A(f'buffer_store_dwordx4 v[{TMP}:{TMP + 3}], v{V_T}, s[20:23], s42 offen')
        A.flush(4)
        A.label(l)

    def publish():
        A(f'v_mov_b32 v{V_T}, 1')
        A('s_mov_b64 exec, 1')
        A(f'buffer_store_byte v{V_T}, off, s[64:67], s2 sc1')
        A('s_mov_b64 exec, -1')

    A('s_add_u32 s51, s34, 40')
    stats_setup()
    for g in stats_loads():
        for x in g:
            A(x)
    wd_loads()
    A('s_waitcnt vmcnt(6)')
    for g in stats_compute():
        for x in g:
            A(x)
    A('s_waitcnt vmcnt(0) lgkmcnt(0)')
    A('s_barrier')
    wd_stores()
    A('s_cmp_lg_u32 s32, 7')
    A(f's_cbranch_scc1 {name}_end')
    publish()
    A('s_endpgm')

    def gen_path(pn):
        P = PATHS[pn]
        NX, NW, TR, RG, STRIDE, XS, WS = P['NX'], P['NW'], P['tr'], P['RG'], P['stride'], P['XS'], P['WS']
        XB = 3 * XS
        assert XB + NSLOT * WS <= XTRA
        XF = lambda b, xt: b * 4 * NX + 4 * xt
        WF = lambda b, t: 8 * NX + b * 4 * NW + 4 * t
        AC = lambda xt, t: ACC + 16 * (xt * NW + t)
        A.label(f'{name}_{pn}')
        if pn == 'gu':
            A('s_mov_b32 s36, s33'); A('s_lshl_b32 s35, s34, 8')
        elif pn == 'q':
            A('s_sub_u32 s36, s33, 18'); A('s_lshl_b32 s35, s34, 8')
            A('s_lshl_b32 s51, s36, 3'); A('s_add_u32 s51, s51, s34')
        else:
            A('s_sub_u32 s42, s33, 23'); A('s_lshr_b32 s36, s42, 1')
            A('s_and_b32 s42, s42, 1'); A('s_lshl_b32 s42, s42, 3'); A('s_add_u32 s53, s42, s34')
            A('s_lshl_b32 s35, s53, 7')
        A('s_and_b32 s54, s32, 3')
        A('s_lshr_b32 s55, s32, 2')
        A('s_cmp_ge_u32 s32, 4')
        A(f's_cbranch_scc1 {name}_{pn}_w')

        def rd_setup():
            A(f's_lshl_b32 s42, s54, {13 if NX == 2 else 12}')
            A(f'v_bfe_u32 v{V_T}, v{V_L31}, 1, 3')
            A(f'v_xor_b32 v{V_T}, v{V_T}, v{V_HF}')
            A(f'v_lshlrev_b32 v{V_T + 1}, 7, v{V_L31}')
            A(f'v_add_u32 v{V_T + 1}, s42, v{V_T + 1}')
            A(f'v_lshl_add_u32 v{VXA}, v{V_T}, 4, v{V_T + 1}')
            for j in range(1, 4):
                A(f'v_xor_b32 v{VXA + j}, {32 * j}, v{VXA}')
            pitch = RG * 16
            A(f'v_bfe_u32 v{V_T}, v{V_LANE}, 2, 2')
            A(f'v_and_b32 v{V_T + 1}, 3, v{V_LANE}')
            A(f'v_lshlrev_b32 v{V_T + 1}, 3, v{V_T + 1}')
            A(f'v_mul_u32_u24 v{V_T + 2}, {pitch}, v{V_T}')
            A(f'v_add_u32 v{V_T + 1}, v{V_T + 1}, v{V_T + 2}')
            A(f'v_mul_u32_u24 v{V_T + 2}, {8 * pitch}, v{V_HF}')
            A(f'v_add_u32 v{V_T + 1}, v{V_T + 1}, v{V_T + 2}')
            A(f'v_bfe_u32 v{V_T + 2}, v{V_LANE}, 4, 1')
            A(f'v_mul_u32_u24 v{V_T + 2}, {UPOFF if pn == "gu" else 32}, v{V_T + 2}')
            A(f'v_add_u32 v{V_T + 1}, v{V_T + 1}, v{V_T + 2}')
            if pn == 'gu':
                A('s_mul_i32 s42, s55, 96'); A(f's_add_u32 s42, s42, {XB}')
                A(f'v_add_u32 v{VWA}, s42, v{V_T + 1}')
            elif pn == 'kv':
                A('s_mul_i32 s42, s55, 10240'); A(f's_add_u32 s42, s42, {XB}')
                A(f'v_add_u32 v{VWA}, s42, v{V_T + 1}')
            else:
                A('s_lshl_b32 s42, s55, 1')
                for tt in range(2):
                    A(f'v_add_u32 v{V_T + 2}, s42, v{V_T}')
                    if tt:
                        A(f'v_add_u32 v{V_T + 2}, 1, v{V_T + 2}')
                    A(f'v_and_b32 v{V_T + 2}, 3, v{V_T + 2}')
                    A(f'v_lshl_add_u32 v{V_T + 2}, v{V_T + 2}, 6, v{V_T + 1}')
                    A(f'v_add_u32 v{VWA + tt}, {XB}, v{V_T + 2}')

        NWA = 2 if pn == 'q' else 1

        def rd_ptr(par):
            return [f'v_add_u32 v{VXC + i}, s61, v{VXA + 2 * par + i}' for i in range(2)] + \
                   [f'v_add_u32 v{VWC + i}, s39, v{VWA + i}' for i in range(NWA)]

        def reads(b, q):
            ops = []
            for xt in range(NX):
                f = XF(b, xt)
                ops.append(f'ds_read_b128 a[{f}:{f + 3}], v{VXC + q} offset:{4096 * xt}')
            pitch = RG * 16
            for t in range(NW):
                f = WF(b, t)
                if pn == 'q':
                    ad, o = VWC + t, q * 16 * pitch
                elif pn == 'gu':
                    ad, o = VWC, q * 16 * pitch + 32 * t
                else:
                    ad, o = VWC, q * 16 * pitch + 64 * t
                ops.append(f'ds_read_b64_tr_b16 a[{f}:{f + 1}], v{ad} offset:{o}')
                ops.append(f'ds_read_b64_tr_b16 a[{f + 2}:{f + 3}], v{ad} offset:{o + 4 * pitch}')
            return ops

        def mfmas(b, first=False):
            ops = []
            for t in range(NW):
                for xt in range(NX):
                    a = AC(xt, t)
                    x, w = XF(b, xt), WF(b, t)
                    c = '0' if first else f'v[{a}:{a + 15}]'
                    if TR:
                        ops.append(f'v_mfma_f32_32x32x16_bf16 v[{a}:{a + 15}], a[{w}:{w + 3}], a[{x}:{x + 3}], {c}')
                    else:
                        ops.append(f'v_mfma_f32_32x32x16_bf16 v[{a}:{a + 15}], a[{x}:{x + 3}], a[{w}:{w + 3}], {c}')
            return ops

        def dma(NP):
            gs = []
            for p in range(NP):
                gs.append([f's_add_u32 m0, s40, {1024 * p}',
                           f'buffer_load_dwordx4 v{VP + p}, s[16:19], s37 offen lds'])
            return gs

        def adv_wr(r, par):
            if r == 'w':
                return ['s_add_u32 s37, s37, s38',
                        f's_add_u32 s40, s40, {WS}',
                        's_cmp_ge_u32 s40, s56',
                        's_cselect_b32 s40, s46, s40']
            hr = 16 * NX
            if par == 0:
                return [f's_add_u32 s37, s37, {hr * 1280}', f's_add_u32 s40, s40, {hr * 128}']
            return [f's_sub_u32 s37, s37, {hr * 1280 - 128}',
                    f's_add_u32 s40, s40, {XS - hr * 128}',
                    's_cmp_ge_u32 s40, s56',
                    's_cselect_b32 s40, s46, s40']

        def adv_rd(par):
            ops = [f's_add_u32 s39, s39, {WS}',
                   f's_cmp_ge_u32 s39, {NSLOT * WS}',
                   's_cselect_b32 s39, 0, s39']
            if par == 1:
                ops += [f's_add_u32 s61, s61, {XS}',
                        f's_cmp_ge_u32 s61, {3 * XS}',
                        's_cselect_b32 s61, 0, s61']
            return ops

        fill = dict(q=[], slots=0)

        def interleave(ms, early, late=()):
            n = len(ms)
            ne = (n + 1) // 2
            de = dl = 0
            for i, m in enumerate(ms):
                A(m)
                if i < ne:
                    want = (len(early) * (i + 1) + ne - 1) // ne
                    while de < want:
                        for x in early[de]:
                            A(x)
                        de += 1
                if i >= ne - 1:
                    want = (len(late) * (i - ne + 2) + (n - ne + 1) - 1) // (n - ne + 1)
                    while dl < min(want, len(late)):
                        for x in late[dl]:
                            A(x)
                        dl += 1
                if fill['q']:
                    k = (len(fill['q']) + fill['slots'] - 1) // fill['slots']
                    for g in fill['q'][:k]:
                        for x in g:
                            A(x)
                    fill['q'] = fill['q'][k:]
                    fill['slots'] -= 1
            assert de == len(early) and dl == len(late)

        def half_stage(r, par, NP, nwait, barrier=True, nxt=True, do_dma=True, mid=None, first=False):
            A('s_waitcnt lgkmcnt(0)')
            interleave(mfmas(0, first), [[r] for r in reads(1, 1)])
            if barrier:
                if nwait is None:
                    A('s_waitcnt lgkmcnt(0)')
                else:
                    A(f's_waitcnt vmcnt({nwait}) lgkmcnt(0)')
                A('s_barrier')
            else:
                A('s_waitcnt lgkmcnt(0)')
            if mid:
                mid()
            gs, gl = [], []
            if nxt:
                for x in adv_rd(par) + rd_ptr(1 - par):
                    A(x)
                gs += [[r] for r in reads(0, 0)]
            if do_dma:
                gl += dma(NP) + [adv_wr(r, par)]
            interleave(mfmas(1), gs, gl)

        SR, SNM, SCS = ST + 48, ST + 50, ST + 52
        NMF, CSF = ST + 16, ST + 24

        def stat_loads():
            A(f'v_lshlrev_b32 v{V_T}, 2, v{V_L31}')
            A(f'v_mul_u32_u24 v{V_T + 2}, {CSH}, v{V_HF}')
            if TR:
                A('s_lshl_b32 s42, s54, 6'); A('s_add_u32 s42, s42, s35'); A('s_lshl_b32 s42, s42, 2')
                A(f's_add_u32 s42, s42, {OFF_RS}'); A('s_add_u32 s43, s42, 8192')
                for xt in range(2):
                    A(f'buffer_load_dword v{SR + xt}, v{V_T}, s[20:23], s42 offen offset:{128 * xt} sc1')
                    A(f'buffer_load_dword v{SNM + xt}, v{V_T}, s[20:23], s43 offen offset:{128 * xt} sc1')
                if pn == 'gu':
                    A(f'v_and_b32 v{V_T + 1}, 15, v{V_LANE}')
                    A(f'v_lshl_add_u32 v{V_T + 2}, v{V_T + 1}, 2, v{V_T + 2}')
                    A(f'v_bfe_u32 v{V_T + 1}, v{V_LANE}, 4, 1')
                    A(f'v_mul_u32_u24 v{V_T + 1}, {1728 * 4}, v{V_T + 1}')
                    A(f'v_add_u32 v{V_T + 2}, v{V_T + 1}, v{V_T + 2}')
                    A('s_mul_i32 s42, s36, 384'); A('s_mul_i32 s43, s55, 192'); A('s_add_u32 s42, s42, s43')
                    A(f's_add_u32 s42, s42, {OFF_CS + 1920 * 4}')
                    for t in range(3):
                        A(f'buffer_load_dword v{SCS + t}, v{V_T + 2}, s[20:23], s42 offen offset:{64 * t} sc1')
                else:
                    A(f'v_add_u32 v{V_T + 2}, v{V_T}, v{V_T + 2}')
                    A('s_lshl_b32 s42, s36, 9'); A('s_lshl_b32 s43, s55, 8'); A('s_add_u32 s42, s42, s43')
                    A(f's_add_u32 s42, s42, {OFF_CS}')
                    for t in range(2):
                        A(f'buffer_load_dword v{SCS + t}, v{V_T + 2}, s[20:23], s42 offen offset:{128 * t} sc1')
            else:
                A('s_lshl_b32 s42, s54, 5'); A('s_add_u32 s42, s42, s35'); A('s_lshl_b32 s42, s42, 2')
                A(f's_add_u32 s42, s42, {OFF_RS}'); A('s_add_u32 s43, s42, 8192')
                A(f'v_lshlrev_b32 v{V_T + 1}, 4, v{V_HF}')
                A(f'v_add_u32 v{V_T + 2}, v{V_T}, v{V_T + 2}')
                A(f'buffer_load_dword v{SNM}, v{V_T}, s[20:23], s43 offen sc1')
                for j in range(4):
                    A(f'buffer_load_dwordx4 v[{ST + 4 * j}:{ST + 4 * j + 3}], v{V_T + 1}, s[20:23], s42 offen offset:{32 * j} sc1')
                A('s_mul_i32 s42, s36, 640'); A('s_mul_i32 s43, s55, 2560'); A('s_add_u32 s42, s42, s43')
                A(f's_add_u32 s42, s42, {OFF_CS + 640 * 4}')
                for t in range(5):
                    A(f'buffer_load_dword v{SCS + t}, v{V_T + 2}, s[20:23], s42 offen offset:{128 * t} sc1')

        def flag_load():
            A(f'v_lshlrev_b32 v{V_T + 3}, 2, v{V_LANE}')
            A(f'buffer_load_dword v{V_FLG}, v{V_T + 3}, s[64:67], 0 offen sc1')

        def flag_test():
            A(f'v_cmp_ne_u32 vcc, 0x01010101, v{V_FLG}')
            A('s_nop 4')
            A('s_cmp_eq_u64 vcc, 0')

        def flag_check():
            no = newl('fno')
            A('s_mov_b32 s59, 0')
            flag_test()
            A(f's_cbranch_scc0 {no}')
            A('s_mov_b32 s59, 0x7fffffff')
            stat_loads()
            A.flush(6)
            A.label(no)
            if pn == 'q':
                wd_loads()

        def flag_slow():
            ok, again = newl('fok'), newl('fag')
            A('s_cmp_lg_u32 s59, 0')
            A(f's_cbranch_scc1 {ok}')
            A.label(again)
            A('s_sleep 24')
            flag_load()
            A('s_add_u32 s59, s59, 1')
            A('s_waitcnt vmcnt(0)')
            flag_test()
            A('s_cselect_b32 s59, 0x7fffffff, s59')
            A('s_cmp_lt_u32 s59, 0x8000')
            A(f's_cbranch_scc1 {again}')
            stat_loads()
            A.flush(6)
            A.label(ok)

        def split3(src, d, side):
            t0, t1 = TMP, TMP + 1
            A(f'v_and_b32 v{t0}, s48, v{src}')
            A(f'v_sub_f32 v{t0}, v{src}, v{t0}')
            A(f'v_and_b32 v{t1}, s48, v{t0}')
            A(f'v_sub_f32 v{t1}, v{t0}, v{t1}')
            if side == 0:
                A(f'v_perm_b32 v{d}, v{src}, v{src}, s49')
                A(f'v_perm_b32 v{d + 1}, v{t0}, v{t0}, s49')
                A(f'v_perm_b32 v{d + 2}, v{t1}, v{src}, s49')
            else:
                A(f'v_perm_b32 v{d}, v{t0}, v{src}, s49')
                A(f'v_perm_b32 v{d + 1}, v{t0}, v{src}, s49')
                A(f'v_perm_b32 v{d + 2}, v{src}, v{t1}, s49')
            A(f'v_mov_b32 v{d + 3}, 0')

        def rank1():
            A('s_mov_b32 s48, 0xffff0000'); A('s_mov_b32 s49, 0x07060302')
            for xt in range(NX):
                split3(SNM + xt, NMF + 4 * xt, 1)
            for t in range(NW):
                split3(SCS + t, CSF + 4 * t, 0)
                for xt in range(NX):
                    a = AC(xt, t)
                    c, n = f'v[{CSF + 4 * t}:{CSF + 4 * t + 3}]', f'v[{NMF + 4 * xt}:{NMF + 4 * xt + 3}]'
                    if TR:
                        A(f'v_mfma_f32_32x32x16_bf16 v[{a}:{a + 15}], {c}, {n}, v[{a}:{a + 15}]')
                    else:
                        A(f'v_mfma_f32_32x32x16_bf16 v[{a}:{a + 15}], {n}, {c}, v[{a}:{a + 15}]')

        def role(r):
            NP = P['NPX'] if r == 'x' else P['NPW']
            if r == 'x':
                A('s_mov_b32 s16, s24'); A('s_mov_b32 s17, s25'); A('s_mov_b32 s18, s26'); A('s_mov_b32 s19, s27')
                A(f'v_lshrrev_b32 v{V_T}, 3, v{V_LANE}')
                A(f'v_mul_u32_u24 v{V_T}, 1280, v{V_T}')
                A(f'v_lshrrev_b32 v{V_T + 1}, 4, v{V_LANE}')
                A(f'v_and_b32 v{V_T + 2}, 7, v{V_LANE}')
                A(f'v_xor_b32 v{V_T + 1}, v{V_T + 1}, v{V_T + 2}')
                A(f'v_lshl_add_u32 v{VP}, v{V_T + 1}, 4, v{V_T}')
                A(f'v_xor_b32 v{VP + 1}, 64, v{VP}')
                A(f'v_add_u32 v{VP + 1}, {8 * 1280}, v{VP + 1}')
                for p in range(2, NP):
                    A(f'v_add_u32 v{VP + p}, {16 * 1280}, v{VP + p - 2}')
                A(f's_lshl_b32 s42, s32, {6 if NX == 2 else 5}'); A('s_add_u32 s42, s42, s35')
                A('s_mul_i32 s37, s42, 1280')
                A(f's_lshl_b32 s46, s32, {13 if NX == 2 else 12}')
                A(f's_add_u32 s56, s46, {3 * XS}')
            else:
                A.label(f'{name}_{pn}_w')
                A('s_and_b32 s42, s32, 1')
                A('s_bfe_u32 s43, s32, 0x10001')
                if pn == 'gu':
                    A('s_cmp_eq_u32 s43, 0')
                    A('s_cselect_b32 s16, s8, s10'); A('s_cselect_b32 s17, s9, s11')
                    A('s_mul_i32 s37, s36, 192')
                    A('s_mul_i32 s50, s42, 3')
                    A(f's_mul_i32 s46, s43, {UPOFF}'); A('s_mul_i32 s42, s42, 3072'); A('s_add_u32 s46, s46, s42')
                elif pn == 'q':
                    A('s_mov_b32 s16, s6'); A('s_mov_b32 s17, s7')
                    A('s_lshl_b32 s37, s36, 8')
                    A('s_lshl_b32 s50, s54, 1')
                    A('s_lshl_b32 s46, s54, 11')
                else:
                    A('s_mov_b32 s16, s6'); A('s_mov_b32 s17, s7')
                    A('s_mul_i32 s37, s36, 320'); A('s_mul_i32 s46, s43, 1280'); A('s_add_u32 s37, s37, s46')
                    A('s_add_u32 s37, s37, 1280')
                    A('s_mul_i32 s50, s42, 5')
                    A('s_mul_i32 s46, s43, 10240'); A('s_mul_i32 s42, s42, 5120'); A('s_add_u32 s46, s46, s42')
                A(f's_add_u32 s46, s46, {XB}')
                A(f's_mov_b32 s18, {640 * STRIDE}'); A('s_mov_b32 s19, 0x20000')
                A(f's_mov_b32 s38, {32 * STRIDE}')
                A(f's_add_u32 s56, s46, {NSLOT * WS}')
                A('s_lshl_b32 s50, s50, 6')
                magic, sh = {12: (43691, 19), 16: (1, 4), 20: (52429, 20)}[RG]
                A(f's_mov_b32 s42, {magic}'); A(f's_mov_b32 s43, {STRIDE}')
                for p in range(NP):
                    g, k, t = V_T, V_T + 1, V_T + 2
                    A(f'v_add_u32 v{g}, s50, v{V_LANE}')
                    if p:
                        A(f'v_add_u32 v{g}, {64 * p}, v{g}')
                    A(f'v_mul_u32_u24 v{k}, s42, v{g}')
                    A(f'v_lshrrev_b32 v{k}, {sh}, v{k}')
                    A(f'v_mul_u32_u24 v{t}, {RG}, v{k}')
                    A(f'v_sub_u32 v{g}, v{g}, v{t}')
                    if pn == 'q':
                        A(f'v_lshrrev_b32 v{t}, 2, v{g}')
                        A(f'v_sub_u32 v{t}, v{t}, v{k}')
                        A(f'v_and_b32 v{t}, 3, v{t}')
                        A(f'v_and_b32 v{g}, 3, v{g}')
                        A(f'v_lshl_add_u32 v{g}, v{t}, 2, v{g}')
                    A(f'v_mul_u32_u24 v{k}, s43, v{k}')
                    A(f'v_lshl_add_u32 v{VP + p}, v{g}, 4, v{k}')
            A('s_mov_b32 s40, s46')
            A('s_nop 4')
            for h in range(4):
                for g in dma(NP) + [adv_wr(r, h & 1)]:
                    for x in g:
                        A(x)
                if h == 1:
                    A('s_barrier')
            later = 3 * NP if r == 'w' else 2 * NP
            stamp(A, 1)
            stats_setup()
            if EARLY:
                for g in stats_loads():
                    for x in g:
                        A(x)
            rd_setup()
            stamp(A)
            A('s_mov_b32 s39, 0')
            A('s_mov_b32 s61, 0')
            for x in rd_ptr(0):
                A(x)
            A(f's_waitcnt vmcnt({later + (10 if EARLY else 0)}) lgkmcnt(0)')
            A('s_barrier')
            stamp(A)
            for x in reads(0, 0):
                A(x)
            fill['q'] = stats_loads()
            fill['slots'] = NX * NW
            S = len(fill['q'])
            if EARLY:
                fill['q'] = []
            A('s_movk_i32 s41, 4')
            nw = (lambda par: 2 * NP) if r == 'w' else (lambda par: NP if par else None)

            def pub():
                if r != 'w':
                    return
                l = newl('np')
                A('s_cmp_lg_u32 s41, s60')
                A(f's_cbranch_scc1 {l}')
                publish()
                A.flush(4)
                A.label(l)

            def start_fill():
                fill['q'] = stats_compute()
                fill['slots'] = 5 * NX * NW
            for h in range(8):
                w = nw(h & 1)
                if w is not None and h < 3:
                    w += S
                mid = None
                if h == 3:
                    mid = start_fill
                if h == 6:
                    assert not fill['q']
                    if r == 'w':
                        mid = cs_phase2
                half_stage(r, h & 1, NP, w, mid=mid, first=(h == 0))
                if h == 3:
                    stamp(A)
            stamp(A)
            A.flush()
            lp = newl('loop')
            A.label(lp)
            half_stage(r, 0, NP, nw(0), mid=pub)
            half_stage(r, 1, NP, nw(1))
            A('s_sub_u32 s41, s41, 1')
            A('s_cmp_lg_u32 s41, 0')
            A.flush()
            A(f's_cbranch_scc1 {lp}')
            stamp(A)

            def m16():
                flag_load()
                if r == 'x':
                    zero_k2_flags()
            half_stage(r, 0, NP, nw(0), do_dma=False, mid=m16)
            half_stage(r, 1, NP, 0, do_dma=False, mid=flag_check)
            half_stage(r, 0, NP, None, barrier=False, do_dma=False)
            half_stage(r, 1, NP, None, barrier=False, nxt=False, do_dma=False)
            stamp(A)
            A.flush()
            if r == 'x':
                A(f's_branch {name}_{pn}_epi')
        role('x')
        role('w')
        A.label(f'{name}_{pn}_epi')

        if pn == 'q':
            A('s_waitcnt vmcnt(0)')
            wd_stores()
        flag_slow()
        if TR:
            ostr = 3456 if pn == 'gu' else 1280
            if BLK:
                ostr = 32
            A('s_lshl_b32 s42, s54, 6'); A('s_add_u32 s42, s42, s35')
            A(f'v_add_u32 v{V_T}, s42, v{V_L31}')
            A(f's_movk_i32 s43, {ostr}')
            A(f'v_mul_lo_u32 v{V_OUT}, v{V_T}, s43')
            A(f'v_lshl_add_u32 v{V_OUT}, v{V_HF}, 4, v{V_OUT}')
        if pn == 'gu':
            if BLK:
                A('s_mul_i32 s42, s36, 6'); A('s_mul_i32 s43, s55, 3'); A('s_add_u32 s42, s42, s43')
                A('s_lshl_b32 s42, s42, 16')
                A(f's_add_u32 s42, s42, {OFF_H}'); A('s_add_u32 s43, s42, 65536'); A('s_add_u32 s50, s42, 131072')
            else:
                A('s_mul_i32 s42, s36, 192'); A('s_mul_i32 s43, s55, 96'); A('s_add_u32 s42, s42, s43')
                A(f's_add_u32 s42, s42, {OFF_H}'); A(f's_add_u32 s43, s42, {32 * 3456}')
            A(f's_mov_b32 s47, {NLOG2E}')
            A('s_waitcnt vmcnt(0)')
            stamp(A)
            rank1()
            C1, RI = ST, ST + 2
            for xt in range(2):
                A(f'v_mul_f32 v{C1 + xt}, s47, v{SR + xt}')
                A(f'v_rcp_f32 v{RI + xt}, v{SR + xt}')
            for t in range(3):
                for xt in range(2):
                    a = AC(xt, t)
                    for i in range(8):
                        A(f'v_mul_f32 v{a + i}, v{C1 + xt}, v{a + i}')
                    for i in range(8):
                        A(f'v_exp_f32 v{a + i}, v{a + i}')
                    for i in range(8):
                        A(f'v_fma_f32 v{a + i}, v{a + i}, v{RI + xt}, v{RI + xt}')
                    for i in range(8):
                        A(f'v_rcp_f32 v{a + i}, v{a + i}')
                    for i in range(8):
                        A(f'v_mul_f32 v{a + 8 + i}, v{a + i}, v{a + 8 + i}')
                    for j in range(4):
                        A(f'v_cvt_pk_bf16_f32 v{a + j}, v{a + 8 + 2 * j}, v{a + 9 + 2 * j}')
                    A(f'v_permlane32_swap_b32 v{a}, v{a + 2}')
                    A(f'v_permlane32_swap_b32 v{a + 1}, v{a + 3}')
                    if BLK:
                        A(f'buffer_store_dwordx4 v[{a}:{a + 3}], v{V_OUT}, s[20:23], {("s42", "s43", "s50")[t]} offen offset:{1024 * xt}{WT}')
                    else:
                        A(f'buffer_store_dwordx4 v[{a}:{a + 3}], v{V_OUT}, s[20:23], {"s43" if xt else "s42"} offen offset:{32 * t}{WT}')
            stamp_dump(A)
            A('s_endpgm')
        elif pn == 'q':
            if BLK:
                A('s_lshl_b32 s42, s36, 19'); A('s_lshl_b32 s43, s55, 18'); A('s_add_u32 s42, s42, s43')
                A(f's_add_u32 s57, s42, {OFF_PQ}'); A('s_add_u32 s58, s57, 65536')
                A('s_add_u32 s50, s57, 131072'); A('s_add_u32 s52, s57, 196608')
            else:
                A('s_lshl_b32 s42, s36, 8'); A('s_lshl_b32 s43, s55, 7'); A('s_add_u32 s42, s42, s43')
                A(f's_add_u32 s57, s42, {OFF_PQ}'); A(f's_add_u32 s58, s57, {32 * 1280}')
            A(f's_waitcnt vmcnt(0)')
            rank1()
            C1 = ST
            for xt in range(2):
                A(f'v_mul_f32 v{C1 + xt}, s44, v{SR + xt}')
            for t in range(2):
                for xt in range(2):
                    a = AC(xt, t)
                    ops = [phi2_ops(a + i, TMP + i, C1 + xt, SR + xt) for i in range(16)]
                    for k in range(6):
                        for i in range(16):
                            A(ops[i][k])
                    for j in range(8):
                        A(f'v_cvt_pk_bf16_f32 v{a + j}, v{a + 2 * j}, v{a + 2 * j + 1}')
                    for pr in range(2):
                        A(f'v_permlane32_swap_b32 v{a + 4 * pr}, v{a + 4 * pr + 2}')
                        A(f'v_permlane32_swap_b32 v{a + 4 * pr + 1}, v{a + 4 * pr + 3}')
                    for pr in range(2):
                        if BLK:
                            A(f'buffer_store_dwordx4 v[{a + 4 * pr}:{a + 4 * pr + 3}], v{V_OUT}, s[20:23], {("s57", "s58", "s50", "s52")[2 * t + pr]} offen offset:{1024 * xt}{WT}')
                        else:
                            A(f'buffer_store_dwordx4 v[{a + 4 * pr}:{a + 4 * pr + 3}], v{V_OUT}, s[20:23], {"s58" if xt else "s57"} offen offset:{64 * t + 32 * pr}{WT}')
            stamp_dump(A)
            A('s_endpgm')
        else:
            EXV = 40960
            A(f'v_lshlrev_b32 v{V_OUT}, 4, v{V_LANE}')
            A('s_lshl_b32 s42, s54, 11'); A(f's_mul_i32 s43, s55, {EXV}'); A('s_add_u32 s42, s42, s43')
            A(f'v_add_u32 v{V_FLG}, s42, v{V_OUT}')
            A('s_waitcnt vmcnt(0)')
            A('s_barrier')
            rank1()
            R, C = ST, ACC + 80
            lv, lj = newl('isv'), newl('kvj')
            A('s_cmp_lg_u32 s55, 0')
            A(f's_cbranch_scc1 {lv}')
            for i in range(16):
                A(f'v_mul_f32 v{C + i}, s44, v{R + i}')
            for t in range(5):
                a = AC(0, t)
                ops = [phi2_ops(a + i, TMP + i, C + i, R + i) for i in range(16)]
                for k in range(6):
                    for i in range(16):
                        A(ops[i][k])
            A.flush(4)
            A(f's_branch {lj}')
            A.label(lv)
            A.flush(12)
            for t in range(5):
                a = AC(0, t)
                for i in range(16):
                    A(f'v_mul_f32 v{a + i}, v{R + i}, v{a + i}')
            A.flush(4)
            A.label(lj)
            for t in range(5):
                a = AC(0, t)
                for j in range(8):
                    A(f'v_cvt_pk_bf16_f32 v{a + j}, v{a + 2 * j}, v{a + 2 * j + 1}')
                A(f'ds_write_b128 v{V_FLG}, v[{a}:{a + 3}] offset:{8192 * t}')
                A(f'ds_write_b128 v{V_FLG}, v[{a + 4}:{a + 7}] offset:{8192 * t + 1024}')
            VKV = ST
            A('s_movk_i32 s48, 3277')
            A('s_movk_i32 s49, 320')
            for cv in range(5):
                t = V_T
                A(f'v_add_u32 v{t}, {32 * cv}, v{V_L31}')
                A(f'v_mul_lo_u32 v{t + 1}, v{t}, s48')
                A(f'v_lshrrev_b32 v{t + 1}, 16, v{t + 1}')
                A(f'v_mul_u32_u24 v{t + 1}, 20, v{t + 1}')
                A(f'v_sub_u32 v{t}, v{t}, v{t + 1}')
                A(f'v_lshlrev_b32 v{t}, 2, v{t}')
                A(f'v_mul_lo_u32 v{t + 1}, v{V_HF}, s49')
                A(f'v_add_u32 v{VKV + cv}, v{t}, v{t + 1}')
            ON = ST + 8
            for j in range(4):
                A(f'v_mov_b32 v{ON + j}, 0x3f803f80')
            A('s_lshl_b32 s57, s53, 5'); A('s_lshl_b32 s42, s36, 3'); A('s_add_u32 s57, s57, s42')
            A('s_mul_i32 s57, s57, 1600'); A(f's_add_u32 s57, s57, {OFF_KVP}')
            A('s_mul_i32 s58, s53, 2560'); A('s_mul_i32 s42, s36, 640'); A('s_add_u32 s58, s58, s42')
            A(f's_add_u32 s58, s58, {OFF_ZP}')
            A('s_waitcnt lgkmcnt(0)')
            A('s_barrier')
            JA, JB, D2 = ACC, ACC + 32, ACC + 64

            def job_block(ck, cv):
                for u in range(4):
                    for h in range(2):
                        A(f'ds_read_b128 v[{JA + 8 * u + 4 * h}:{JA + 8 * u + 4 * h + 3}], v{V_OUT} offset:{ck * 8192 + u * 2048 + h * 1024}')
                        if cv is not None:
                            A(f'ds_read_b128 v[{JB + 8 * u + 4 * h}:{JB + 8 * u + 4 * h + 3}], v{V_FLG} offset:{cv * 8192 + u * 2048 + h * 1024}')
                n = 0
                per = 2 if cv is not None else 1
                for u in range(4):
                    for h in range(2):
                        n += 1
                        A(f's_waitcnt lgkmcnt({per * (8 - n)})')
                        b = f'v[{JB + 8 * u + 4 * h}:{JB + 8 * u + 4 * h + 3}]' if cv is not None else f'v[{ON}:{ON + 3}]'
                        c = '0' if n == 1 else f'v[{D2}:{D2 + 15}]'
                        A(f'v_mfma_f32_32x32x16_bf16 v[{D2}:{D2 + 15}], v[{JA + 8 * u + 4 * h}:{JA + 8 * u + 4 * h + 3}], {b}, {c}')
                if cv is None:
                    A(f'v_lshlrev_b32 v{V_T}, 4, v{V_HF}')
                    A(f's_add_u32 s42, s58, {128 * ck}')
                    A('s_mov_b32 exec_lo, 1'); A('s_mov_b32 exec_hi, 1')
                    for q in range(4):
                        A(f'buffer_store_dwordx4 v[{D2 + 4 * q}:{D2 + 4 * q + 3}], v{V_T}, s[20:23], s42 offen offset:{32 * q}')
                    A('s_mov_b64 exec, -1')
                    return
                A(f's_add_u32 s42, s57, {32 * ck * 80}')
                for i in range(16):
                    masks = []
                    for hf in range(2):
                        nk = 32 * ck + 8 * (i >> 2) + 4 * hf + (i & 3)
                        m = 0
                        for l in range(32):
                            if (32 * cv + l) // 20 == nk // 20:
                                m |= 1 << l
                        masks.append(m)
                    if not (masks[0] or masks[1]):
                        continue
                    A(f's_mov_b32 exec_lo, 0x{masks[0]:x}')
                    A(f's_mov_b32 exec_hi, 0x{masks[1]:x}')
                    A(f'buffer_store_dword v{D2 + i}, v{VKV + cv}, s[20:23], s42 offen offset:{(8 * (i >> 2) + (i & 3)) * 80}')
                A('s_mov_b64 exec, -1')
            A(f'v_add_u32 v{V_FLG}, {EXV}, v{V_OUT}')
            full = [(c, c) for c in range(5)] + [(c - 1, c) for c in range(1, 5)] + [(c, c - 1) for c in range(1, 5)]
            zs = [(c, None) for c in range(5)]
            assign = [[] for _ in range(8)]
            for i, j in enumerate(full[:10]):
                assign[i % 5].append(j)
            for i, j in enumerate(full[10:]):
                assign[5 + i].append(j)
            for i, j in enumerate(zs):
                assign[5 + (i % 3)].append(j)
            for w in range(8):
                nl = newl('jw')
                if w < 7:
                    A(f's_cmp_lg_u32 s32, {w}')
                    A(f's_cbranch_scc1 {nl}')
                for j in assign[w]:
                    job_block(*j)
                    A.flush()
                sv = _sn[0]
                stamp_dump(A)
                _sn[0] = sv
                A('s_endpgm')
                if w < 7:
                    A.label(nl)

    for pn in ('gu', 'q', 'kv'):
        gen_path(pn)
    A.label(f'{name}_end')
    A('s_endpgm')
```

```python
from asmlib import Asm
from layout import *
import os

SLOT = 18432
BOFF = 8192
WREG = 2 * SLOT
SCR = 4 * WREG
K2_LDS = SCR + 16384
EPS6 = 0x358637bd
NLOG2E = 0xbfb8aa3b
FL = os.environ.get('K2FLAGS', '').split(',')
STAMP = 'stamp' in FL
BLK = 'blk' in FL
STAMP_OFF = 16 << 20

V_LANE = 1
V_A = 2
V_BD = 3
V_RA0, V_RA1, V_RB, V_RB4 = 8, 9, 10, 11
V_X = 12
V_AE = 29
V_T = 13
F0 = 32
FSZ = 72
XR = 176
K2_VGPR = 256
K2_AGPR = 160
SLEEP0 = int(os.environ.get('SLEEP0', '48'))
SLEEP1 = int(os.environ.get('SLEEP1', '10'))
PRE = 3


class Stamper:
    def __init__(self):
        self.n = 0

    def __call__(self, A):
        if not STAMP:
            return
        assert self.n < 14
        A(f's_memtime s[{70 + 2 * self.n}:{71 + 2 * self.n}]')
        self.n += 1

    def dump(self, A):
        if not STAMP:
            return
        self(A)
        A('s_waitcnt lgkmcnt(0)')
        A('s_lshl_b32 s62, s2, 2')
        A('s_add_u32 s62, s62, s34')
        A('s_lshl_b32 s62, s62, 9')
        A(f's_add_u32 s62, s62, {STAMP_OFF}')
        A('s_mov_b64 exec, 1')
        for i in range(self.n):
            A(f'v_mov_b32 v2, s{70 + 2 * i}')
            A(f'v_mov_b32 v3, s{71 + 2 * i}')
            A(f'buffer_store_dwordx2 v[2:3], off, s[16:19], s62 offset:{8 * i}')
            A('s_nop 1')
        A('v_mov_b32 v2, 0')
        A('v_mov_b32 v3, 0')
        A(f'buffer_store_dwordx2 v[2:3], off, s[16:19], s62 offset:{8 * self.n}')
        A('s_mov_b64 exec, -1')


def gen_k2(A, name):
    A.raw(f'.globl {name}')
    A.raw('.p2align 8')
    A.raw(f'.type {name},@function')
    A.label(name)
    A('s_cmp_ge_u32 s2, 256')
    A(f's_cbranch_scc1 {name}_end')
    A('s_load_dwordx2 s[4:5], s[0:1], 0')
    A('s_load_dwordx4 s[8:11], s[0:1], 48')
    A('s_load_dwordx2 s[6:7], s[0:1], 72')
    A('s_load_dwordx2 s[50:51], s[0:1], 16')
    A('s_and_b32 s42, s2, 7')
    A('s_lshr_b32 s43, s2, 3')
    A('s_and_b32 s32, s43, 7')
    A('s_lshr_b32 s43, s43, 3')
    A('s_lshl_b32 s33, s42, 2')
    A('s_add_u32 s33, s33, s43')
    A(f'v_and_b32 v{V_LANE}, 63, v0')
    A(f'v_lshrrev_b32 v{V_T}, 6, v0')
    A(f'v_readfirstlane_b32 s34, v{V_T}')
    A('s_lshr_b32 s56, s2, 3')
    A('s_and_b32 s57, s2, 7')
    A('s_waitcnt lgkmcnt(0)')
    A('s_mov_b32 s12, s4'); A('s_and_b32 s13, s5, 0xffff'); A(f's_mov_b32 s14, {2048 * 1280}'); A('s_mov_b32 s15, 0x20000')
    A('s_mov_b32 s16, s6'); A('s_and_b32 s17, s7, 0xffff'); A(f's_mov_b32 s18, {(32 << 20) if STAMP else WS_END}'); A('s_mov_b32 s19, 0x20000')
    A('s_mov_b32 s20, s8'); A('s_and_b32 s21, s9, 0xffff'); A(f's_mov_b32 s22, {1728 * 1280}'); A('s_mov_b32 s23, 0x20000')
    A('s_mov_b32 s24, s10'); A('s_and_b32 s25, s11, 0xffff'); A(f's_mov_b32 s26, {2048 * 1280}'); A('s_mov_b32 s27, 0x20000')
    A('s_mov_b32 s52, s50'); A('s_and_b32 s53, s51, 0xffff'); A(f's_mov_b32 s54, {640 * 1280}'); A('s_mov_b32 s55, 0x20000')
    A(f's_mul_i32 s35, s34, {WREG}')
    for i in range(5):
        A(f'v_mov_b32 v{24 + i}, 0')
    A('s_cmp_ge_u32 s34, 2')
    A(f's_cbranch_scc1 {name}_paw_ld')

    VQ = 24
    ZR = 32
    A('s_movk_i32 s44, 1639')
    for i in range(5):
        t = V_T
        A(f'v_add_u32 v{t}, {64 * i}, v{V_LANE}')
        A(f'v_mul_lo_u32 v{t + 1}, v{t}, s44')
        A(f'v_lshrrev_b32 v{t + 1}, 16, v{t + 1}')
        A(f'v_mul_u32_u24 v{t + 2}, 40, v{t + 1}')
        A(f'v_sub_u32 v{t + 2}, v{t}, v{t + 2}')
        if BLK:
            A(f'v_lshrrev_b32 v{t + 3}, 1, v{t + 2}')
            A(f'v_lshlrev_b32 v{t + 3}, 16, v{t + 3}')
            A(f'v_lshl_add_u32 v{t + 3}, v{t + 1}, 5, v{t + 3}')
            A(f'v_and_b32 v{t + 4}, 1, v{t + 2}')
            A(f'v_lshl_add_u32 v{ZR + i}, v{t + 4}, 4, v{t + 3}')
        A(f'v_mul_u32_u24 v{t + 1}, 1280, v{t + 1}')
        A(f'v_lshl_add_u32 v{VQ + i}, v{t + 2}, 4, v{t + 1}')
    A('s_mul_i32 s58, s2, 10240')
    A('s_mul_i32 s59, s34, 640')
    A('s_add_u32 s58, s58, s59')
    A(f's_add_u32 s60, s58, {OFF_PQ}')
    if BLK:
        A(f's_mul_i32 s60, s34, {20 * 65536}')
        A('s_lshl_b32 s59, s2, 8')
        A('s_add_u32 s60, s60, s59')
        A(f's_add_u32 s60, s60, {OFF_PQ}')
    A('s_mul_i32 s61, s34, 5120')
    A(f's_add_u32 s61, s61, {SCR}')
    for i in range(5):
        A(f's_add_u32 m0, s61, {i * 1024}')
        A(f'buffer_load_dwordx4 v{ZR + i if BLK else VQ + i}, s[16:19], s60 offen lds')
    A(f'v_and_b32 v{V_T}, 15, v{V_LANE}')
    A('s_lshl_b32 s44, s34, 4')
    A(f'v_add_u32 v{V_T}, s44, v{V_T}')
    A(f'v_mul_u32_u24 v{V_T}, 80, v{V_T}')
    A(f'v_lshrrev_b32 v{V_T + 1}, 4, v{V_LANE}')
    A(f'v_mul_u32_u24 v{V_T + 2}, 10240, v{V_T + 1}')
    A(f'v_add_u32 v{V_T}, v{V_T}, v{V_T + 2}')
    for p in range(4):
        A(f's_mov_b32 s44, {OFF_ZP + p * 2560}')
        for q in range(5):
            r = ZR + 20 * p + 4 * q
            A(f'buffer_load_dwordx4 v[{r}:{r + 3}], v{V_T}, s[16:19], s44 offen offset:{16 * q}')
    NPA_A = 25
    A(f's_branch {name}_pa_ld_done')

    A.label(f'{name}_paw_ld')
    KR = 32
    WOR = 96
    A('s_sub_u32 s44, s34, 2')
    A('s_mul_i32 s58, s56, 1600')
    A('s_mul_i32 s59, s44, 800')
    A('s_add_u32 s58, s58, s59')
    A(f's_add_u32 s58, s58, {OFF_KVP}')
    A(f'v_min_u32 v{V_T}, 49, v{V_LANE}')
    A(f'v_lshlrev_b32 v{V_T}, 4, v{V_T}')
    for p in range(16):
        A(f's_add_u32 s59, s58, {p * 51200}')
        A(f'buffer_load_dwordx4 v[{KR + 4 * p}:{KR + 4 * p + 3}], v{V_T}, s[16:19], s59 offen')
    A(f'v_min_u32 v{V_T + 1}, 39, v{V_LANE}')
    A(f'v_lshlrev_b32 v{V_T + 1}, 2, v{V_T + 1}')
    A('s_mul_i32 s58, s56, 25600')
    A('s_mul_i32 s59, s57, 160')
    A('s_add_u32 s58, s58, s59')
    for e in range(20):
        A(f's_add_u32 s59, s58, {e * 1280}')
        A(f'buffer_load_dword v{WOR + e}, v{V_T + 1}, s[52:55], s59 offen')
    A('s_mul_i32 s61, s44, 2560')
    A(f's_add_u32 s61, s61, {SCR + 10240}')
    A('s_mul_i32 s60, s57, 102400')
    A('s_mul_i32 s59, s56, 3200')
    A('s_add_u32 s60, s60, s59')
    A('s_mul_i32 s59, s44, 1600')
    A('s_add_u32 s60, s60, s59')
    A(f's_add_u32 s60, s60, {OFF_WP}')
    A.label(f'{name}_pa_ld_done')

    A(f'v_lshrrev_b32 v{V_T}, 3, v{V_LANE}')
    A(f'v_and_b32 v{V_T + 1}, 7, v{V_LANE}')
    A(f'v_xor_b32 v{V_T + 1}, v{V_T + 1}, v{V_T}')
    A(f'v_lshlrev_b32 v{V_T + 1}, 4, v{V_T + 1}')
    if BLK:
        A(f'v_lshrrev_b32 v{V_T + 2}, 5, v{V_T + 1}')
        A(f'v_lshlrev_b32 v{V_T + 2}, 16, v{V_T + 2}')
        A(f'v_and_b32 v{V_T + 3}, 16, v{V_T + 1}')
        A(f'v_lshl_add_u32 v{V_A}, v{V_T}, 5, v{V_T + 2}')
        A(f'v_add_u32 v{V_A}, v{V_A}, v{V_T + 3}')
    else:
        A(f'v_mul_u32_u24 v{V_A}, 3456, v{V_T}')
        A(f'v_add_u32 v{V_A}, v{V_A}, v{V_T + 1}')
    A(f'v_mul_u32_u24 v{V_AE}, 1280, v{V_T}')
    A(f'v_add_u32 v{V_AE}, v{V_AE}, v{V_T + 1}')
    A('s_movk_i32 s47, 6554')
    for ii in range(5):
        t = V_T
        A(f'v_add_u32 v{t}, {64 * ii}, v{V_LANE}')
        A(f'v_mul_lo_u32 v{t + 1}, v{t}, s47')
        A(f'v_lshrrev_b32 v{t + 1}, 16, v{t + 1}')
        A(f'v_mul_u32_u24 v{t + 2}, 10, v{t + 1}')
        A(f'v_sub_u32 v{t + 2}, v{t}, v{t + 2}')
        A(f'v_bfe_u32 v{t + 3}, v{t + 1}, 3, 1')
        A(f'v_lshlrev_b32 v{t + 3}, 1, v{t + 3}')
        A(f'v_sub_u32 v{t + 2}, v{t + 2}, v{t + 3}')
        A(f'v_add_u32 v{t + 3}, 10, v{t + 2}')
        A(f'v_cmp_gt_i32 vcc, 0, v{t + 2}')
        A(f'v_cndmask_b32 v{t + 2}, v{t + 2}, v{t + 3}, vcc')
        A(f'v_lshlrev_b32 v{t + 2}, 4, v{t + 2}')
        A(f'v_mul_u32_u24 v{t + 1}, 160, v{t + 1}')
        A(f'v_add_u32 v{V_BD + ii}, v{t + 1}, v{t + 2}')
    A('s_lshl_b32 s42, s33, 6')
    if BLK:
        A('s_lshl_b32 s36, s42, 5')
        A(f's_mul_i32 s43, s34, {7 * 4 * 65536}')
    else:
        A('s_mul_i32 s36, s42, 3456')
        A('s_mul_i32 s43, s34, 896')
    A('s_add_u32 s36, s36, s43')
    A(f's_add_u32 s36, s36, {OFF_H}')
    A(f's_mul_i32 s37, s32, {1728 * 160}')
    A(f's_mul_i32 s43, s34, {7 * 64 * 160}')
    A('s_add_u32 s37, s37, s43')
    A(f's_add_u32 s37, s37, {OFF_WD}')
    A('s_mul_i32 s40, s42, 1280')
    A('s_lshl_b32 s43, s34, 8')
    A('s_add_u32 s40, s40, s43')
    A(f's_add_u32 s40, s40, {OFF_AP}')
    A('s_mul_i32 s41, s32, 102400')
    A(f's_mul_i32 s43, s34, {2 * 64 * 160}')
    A('s_add_u32 s41, s41, s43')
    A(f's_add_u32 s41, s41, {OFF_WP}')

    def issue_ops(n, ny):
        slot = (n & 1) * SLOT
        sw = n >= ny
        k = n - ny if sw else n
        ops = []
        for i in range(8):
            g = []
            if i == 0:
                g.append(f's_add_u32 s48, {"s40" if sw else "s36"}, {(262144 if (BLK and not sw) else 128) * k}')
            else:
                g.append(f's_add_u32 s48, s48, {8 * (1280 if sw else (32 if BLK else 3456))}')
            g.append(f's_add_u32 m0, s35, {slot + i * 1024}')
            g.append(f'buffer_load_dwordx4 v{V_AE if sw else V_A}, s[16:19], s48 offen' + (' sc1 lds' if sw else ' lds'))
            ops.append(g)
        for u in range(10):
            g = []
            if u == 0:
                g.append(f's_add_u32 s49, {"s41" if sw else "s37"}, {64 * k * 160}')
            if u == 5:
                g.append('s_add_u32 s49, s49, 5120')
            g.append(f's_add_u32 m0, s35, {slot + BOFF + u * 1024}')
            g.append(f'buffer_load_dwordx4 v{V_BD + u % 5}, s[16:19], s49 offen' + (' sc1 lds' if sw else ' lds'))
            ops.append(g)
        return ops

    def issue(n, sw):
        for g in issue_ops(n, sw):
            for i in g:
                A(i)

    ST = Stamper()
    ST(A)
    issue(0, 6)
    issue(1, 6)
    A(f'v_and_b32 v{V_T}, 15, v{V_LANE}')
    A(f'v_lshlrev_b32 v{V_T}, 7, v{V_T}')
    A(f'v_add_u32 v{V_T}, s35, v{V_T}')
    A(f'v_lshrrev_b32 v{V_T + 1}, 4, v{V_LANE}')
    A(f'v_and_b32 v{V_T + 2}, 7, v{V_LANE}')
    A(f'v_xor_b32 v{V_T + 2}, v{V_T + 2}, v{V_T + 1}')
    A(f'v_lshl_add_u32 v{V_RA0}, v{V_T + 2}, 4, v{V_T}')
    A(f'v_xor_b32 v{V_RA1}, 64, v{V_RA0}')
    A(f'v_bfe_u32 v{V_T + 2}, v{V_LANE}, 2, 2')
    A(f'v_lshl_add_u32 v{V_T + 2}, v{V_T + 1}, 3, v{V_T + 2}')
    A(f'v_mul_u32_u24 v{V_T + 2}, 160, v{V_T + 2}')
    A(f'v_bfe_u32 v{V_T + 3}, v{V_LANE}, 1, 1')
    A(f'v_bfe_u32 v{V_T + 4}, v{V_LANE}, 4, 1')
    A(f'v_lshl_add_u32 v{V_T + 3}, v{V_T + 4}, 1, v{V_T + 3}')
    A(f'v_lshl_add_u32 v{V_T + 2}, v{V_T + 3}, 4, v{V_T + 2}')
    A(f'v_and_b32 v{V_T + 3}, 1, v{V_LANE}')
    A(f'v_lshl_add_u32 v{V_T + 2}, v{V_T + 3}, 3, v{V_T + 2}')
    A(f's_add_u32 s44, s35, {BOFF}')
    A(f'v_add_u32 v{V_RB}, s44, v{V_T + 2}')
    A(f'v_mul_u32_u24 v{V_T + 3}, 160, v{V_T + 4}')
    A(f'v_add_u32 v{V_RB4}, 128, v{V_RB}')
    A(f'v_sub_u32 v{V_RB4}, v{V_RB4}, v{V_T + 3}')
    A(f'v_and_b32 v{V_T}, 15, v{V_LANE}')
    A('s_lshl_b32 s44, s34, 4')
    A('s_add_u32 s44, s44, s42')
    A(f'v_add_u32 v{V_T}, s44, v{V_T}')
    A('s_movk_i32 s44, 1280')
    A(f'v_mul_lo_u32 v{V_X}, v{V_T}, s44')
    A(f'v_lshl_add_u32 v{V_X}, v{V_T + 1}, 3, v{V_X}')
    A('s_mul_i32 s45, s32, 160')
    A(f'v_add_u32 v{V_X}, s45, v{V_X}')
    A('s_lshl_b32 s63, s2, 4')
    A('s_lshl_b32 s44, s34, 2')
    A('s_add_u32 s63, s63, s44')
    A(f's_add_u32 s63, s63, {OFF_FLG}')
    A('s_mov_b32 s64, 0xffff0000')
    A('s_cmp_ge_u32 s34, 2')
    A(f's_cbranch_scc1 {name}_paw')

    A('s_waitcnt vmcnt(36)')
    for p in range(1, 4):
        for j in range(20):
            A(f'v_add_f32 v{ZR + j}, v{ZR + j}, v{ZR + 20 * p + j}')
    for perm in ('v_permlane16_swap_b32', 'v_permlane32_swap_b32'):
        for j in range(20):
            A(f'v_mov_b32 v{ZR + 20 + j}, v{ZR + j}')
        for j in range(20):
            A(f'{perm} v{ZR + j}, v{ZR + 20 + j}')
        for j in range(20):
            A(f'v_add_f32 v{ZR + j}, v{ZR + j}, v{ZR + 20 + j}')
    A(f'v_and_b32 v{V_T}, 15, v{V_LANE}')
    A(f'v_mul_u32_u24 v{V_T}, 40, v{V_T}')
    A(f'v_lshrrev_b32 v{V_T + 1}, 4, v{V_LANE}')
    A(f'v_mul_u32_u24 v{V_T + 1}, 640, v{V_T + 1}')
    A(f'v_add3_u32 v{V_T}, v{V_T}, v{V_T + 1}, s61')
    PQR = 72
    U = 96
    for it in range(2):
        for q in range(5):
            r = PQR + 10 * it + 2 * q
            A(f'ds_read_b64 v[{r}:{r + 1}], v{V_T} offset:{it * 2560 + 8 * q}')
    A(f's_mov_b32 s44, {EPS6}')
    A('s_waitcnt lgkmcnt(0)')
    for it in range(2):
        for j in range(10):
            A(f'v_lshlrev_b32 v{U + 20 * it + 2 * j}, 16, v{PQR + 10 * it + j}')
            A(f'v_and_b32 v{U + 20 * it + 2 * j + 1}, s64, v{PQR + 10 * it + j}')
    for it in range(2):
        A(f'v_mul_f32 v{V_T + 2 + it}, v{U + 20 * it}, v{ZR}')
    for j in range(1, 20):
        for it in range(2):
            A(f'v_fmac_f32 v{V_T + 2 + it}, v{U + 20 * it + j}, v{ZR + j}')
    for it in range(2):
        A(f'v_add_f32 v{V_T + 2 + it}, s44, v{V_T + 2 + it}')
    for it in range(2):
        A(f'v_rcp_f32 v{V_T + 2 + it}, v{V_T + 2 + it}')
    for it in range(2):
        for j in range(20):
            A(f'v_mul_f32 v{U + 20 * it + j}, v{V_T + 2 + it}, v{U + 20 * it + j}')
        for j in range(10):
            A(f'v_cvt_pk_bf16_f32 v{PQR + 10 * it + j}, v{U + 20 * it + 2 * j}, v{U + 20 * it + 2 * j + 1}')
        for q in range(5):
            r = PQR + 10 * it + 2 * q
            A(f'ds_write_b64 v{V_T}, v[{r}:{r + 1}] offset:{it * 2560 + 8 * q}')
    A(f'v_lshl_add_u32 v{V_T + 1}, v{V_LANE}, 4, s61')
    A('s_waitcnt lgkmcnt(0)')
    for i in range(5):
        A(f'ds_read_b128 v[{U + 4 * i}:{U + 4 * i + 3}], v{V_T + 1} offset:{i * 1024}')
    A(f's_add_u32 s60, s58, {OFF_AP}')
    for i in range(5):
        A(f's_waitcnt lgkmcnt({4 - i})')
        A(f'buffer_store_dwordx4 v[{U + 4 * i}:{U + 4 * i + 3}], v{VQ + i}, s[16:19], s60 offen sc1')
    A(f's_branch {name}_pa_done')

    A.label(f'{name}_paw')
    A('s_waitcnt vmcnt(36)')
    for p in range(1, 16):
        for i in range(4):
            A(f'v_add_f32 v{KR + i}, v{KR + i}, v{KR + 4 * p + i}')
    A(f'v_min_u32 v{V_T}, 49, v{V_LANE}')
    A(f'v_lshl_add_u32 v{V_T}, v{V_T}, 4, s61')
    A(f'ds_write_b128 v{V_T}, v[{KR}:{KR + 3}]')
    WU = 120
    for e in range(20):
        A(f'v_lshlrev_b32 v{WU + 2 * e}, 16, v{WOR + e}')
        A(f'v_and_b32 v{WU + 2 * e + 1}, s64, v{WOR + e}')
    A(f'v_mov_b32 v{V_T + 1}, s61')
    A('s_waitcnt lgkmcnt(0)')
    KB = 32
    OUTR = 160
    PKR = 180

    def kread(d):
        for q in range(5):
            r = KB + 20 * (d % 3) + 4 * q
            A(f'ds_read_b128 v[{r}:{r + 3}], v{V_T + 1} offset:{d * 80 + 16 * q}')
    kread(0)
    kread(1)
    for d in range(10):
        if d + 2 < 10:
            kread(d + 2)
        A(f's_waitcnt lgkmcnt({5 * min(2, 9 - d)})')
        kb = KB + 20 * (d % 3)
        o = OUTR + 2 * d
        for e in range(20):
            kp = kb + (e & ~1)
            sel = 'op_sel:[0,1,0] op_sel_hi:[1,1,1]' if e & 1 else 'op_sel:[0,0,0] op_sel_hi:[1,0,1]'
            if e == 0:
                A(f'v_pk_mul_f32 v[{o}:{o + 1}], v[{WU}:{WU + 1}], v[{kp}:{kp + 1}] op_sel:[0,0] op_sel_hi:[1,0]')
            else:
                A(f'v_pk_fma_f32 v[{o}:{o + 1}], v[{WU + 2 * e}:{WU + 2 * e + 1}], v[{kp}:{kp + 1}], v[{o}:{o + 1}] {sel}')
    for d in range(10):
        A(f'v_cvt_pk_bf16_f32 v{PKR + d}, v{OUTR + 2 * d}, v{OUTR + 2 * d + 1}')
    A(f'v_min_u32 v{V_T}, 39, v{V_LANE}')
    A(f'v_lshl_add_u32 v{V_T}, v{V_T}, 2, s61')
    for d in range(10):
        A(f'ds_write_b32 v{V_T}, v{PKR + d} offset:{896 + d * 160}')
    A(f'v_lshlrev_b32 v{V_T + 2}, 4, v{V_LANE}')
    A(f'v_add_u32 v{V_T + 1}, s61, v{V_T + 2}')
    A('s_waitcnt lgkmcnt(0)')
    A(f'ds_read_b128 v[{KB}:{KB + 3}], v{V_T + 1} offset:896')
    A(f'ds_read_b128 v[{KB + 4}:{KB + 7}], v{V_T + 1} offset:{896 + 1024}')
    A('s_waitcnt lgkmcnt(0)')
    A(f'buffer_store_dwordx4 v[{KB}:{KB + 3}], v{V_T + 2}, s[16:19], s60 offen sc1')
    A(f'v_cmp_gt_u32 vcc, 36, v{V_LANE}')
    A('s_and_saveexec_b64 s[66:67], vcc')
    A(f'buffer_store_dwordx4 v[{KB + 4}:{KB + 7}], v{V_T + 2}, s[16:19], s60 offen offset:1024 sc1')
    A('s_mov_b64 exec, s[66:67]')
    A.label(f'{name}_pa_done')
    ST(A)

    def flag():
        A(f'v_mov_b32 v{V_T}, 1')
        A('s_mov_b64 exec, 1')
        A(f'buffer_store_dword v{V_T}, off, s[16:19], s63 sc1')
        A('s_mov_b64 exec, -1')

    def read_ops(n):
        so = (n & 1) * SLOT
        f0 = F0 + FSZ * (n & 1)
        ops = []
        for ks in range(2):
            for nt in range(5):
                f = f0 + 32 + 20 * ks + 4 * nt
                if nt < 4:
                    ops.append(f'ds_read_b64_tr_b16 v[{f}:{f + 1}], v{V_RB} offset:{so + ks * 5120 + 32 * nt}')
                    ops.append(f'ds_read_b64_tr_b16 v[{f + 2}:{f + 3}], v{V_RB} offset:{so + ks * 5120 + 640 + 32 * nt}')
                else:
                    ops.append(f'ds_read_b64_tr_b16 v[{f}:{f + 1}], v{V_RB4} offset:{so + ks * 5120}')
                    ops.append(f'ds_read_b64_tr_b16 v[{f + 2}:{f + 3}], v{V_RB4} offset:{so + ks * 5120 + 640}')
            for rt in range(4):
                f = f0 + 16 * ks + 4 * rt
                ops.append(f'ds_read_b128 v[{f}:{f + 3}], v{V_RA1 if ks else V_RA0} offset:{so + rt * 2048}')
        return ops

    POLLR = XR

    def poll_issue():
        for i in range(4):
            A(f'buffer_load_dwordx4 v[{POLLR + 4 * i}:{POLLR + 4 * i + 3}], v{V_FL}, s[16:19], s65 offen offset:{16 * i} sc1')

    def poll_check(tag):
        A('s_mov_b32 s45, 20000')
        A.label(f'{name}_poll{tag}')
        for i in range(1, 16):
            A(f'v_and_b32 v{POLLR}, v{POLLR}, v{POLLR + i}')
        A(f'v_cmp_ne_u32 vcc, 1, v{POLLR}')
        A('s_sub_u32 s45, s45, 1')
        A('s_cmp_eq_u32 s45, 0')
        A(f's_cbranch_scc1 {name}_poll_done{tag}')
        A('s_nop 1')
        A(f's_cbranch_vccz {name}_poll_done{tag}')
        A(f's_sleep {SLEEP1}')
        poll_issue()
        A('s_waitcnt vmcnt(0)')
        A(f's_branch {name}_poll{tag}')
        A.label(f'{name}_poll_done{tag}')
        if 'inv' in FL:
            A('buffer_inv sc1')

    def main_loop(N, ny, tag):
        for i in read_ops(0):
            A(i)
        A('s_waitcnt lgkmcnt(0)')
        issue(2, ny)
        for n in range(N):
            f0 = F0 + FSZ * (n & 1)
            rd = read_ops(n + 1) if n + 1 < N else []
            dm = issue_ops(n + 3, ny) if n + 3 < N else []
            ab = 80 if n >= ny else 0
            m = 0
            for ks in range(2):
                for rt in range(4):
                    for nt in range(5):
                        if m == PRE and n + 1 < N:
                            A(f's_waitcnt vmcnt({18 if n + 2 < N else 0})')
                            if n == 0:
                                flag()
                            if n in (0, ny - 3, N - 2):
                                ST(A)
                            if n + 4 == ny:
                                poll_issue()
                        if m == PRE + 16 and n + 1 < N:
                            A('s_waitcnt lgkmcnt(0)')
                            if n + 3 == ny:
                                poll_check(tag)
                                ST(A)
                        fa = f0 + 16 * ks + 4 * rt
                        fb = f0 + 32 + 20 * ks + 4 * nt
                        d = ab + 4 * (5 * rt + nt)
                        c = '0' if (n in (0, ny) and ks == 0) else f'a[{d}:{d + 3}]'
                        A(f'v_mfma_f32_16x16x32_bf16 a[{d}:{d + 3}], v[{fb}:{fb + 3}], v[{fa}:{fa + 3}], {c}')
                        if m >= PRE and rd:
                            A(rd.pop(0))
                            A(rd.pop(0))
                        elif m >= PRE + 16 and dm:
                            for i in dm.pop(0):
                                A(i)
                        if n == N - 1 and m == 0:
                            for t in range(5):
                                r = XR + 2 * t
                                A(f'buffer_load_dwordx2 v[{r}:{r + 1}], v{V_X}, s[12:15], 0 offen offset:{t * 32}')
                        m += 1
            assert not rd and not dm

    V_FL = 30
    A(f'v_lshlrev_b32 v{V_FL}, 6, v{V_LANE}')
    A(f's_mov_b32 s65, {OFF_FLG}')
    A('s_waitcnt vmcnt(20)')
    ST(A)
    n0 = ST.n
    A('s_cmp_eq_u32 s34, 3')
    A(f's_cbranch_scc1 {name}_w3')
    main_loop(9, 7, 'a')
    ST(A)
    n1 = ST.n
    A(f's_branch {name}_fin')
    A.label(f'{name}_w3')
    ST.n = n0
    main_loop(10, 6, 'b')
    ST(A)
    assert ST.n == n1
    A.label(f'{name}_fin')
    A(f'v_lshl_add_u32 v{V_T}, v{V_LANE}, 4, s35')
    A('s_lshl_b32 s44, s34, 12')
    A(f's_add_u32 s44, s44, {SCR}')
    A(f'v_lshl_add_u32 v{V_T + 1}, v{V_LANE}, 4, s44')
    A('s_nop 7')
    for j in range(36):
        A(f'ds_write_b128 v{V_T}, a[{4 * j}:{4 * j + 3}] offset:{j * 1024}')
    for j in range(36, 40):
        A(f'ds_write_b128 v{V_T + 1}, a[{4 * j}:{4 * j + 3}] offset:{(j - 36) * 1024}')
    A('s_mul_i32 s44, s34, 5120')
    A(f'v_lshl_add_u32 v{V_T}, v{V_LANE}, 4, s44')
    A(f'v_add_u32 v{V_T + 1}, {2 * WREG}, v{V_T}')
    A(f'v_lshlrev_b32 v{V_T + 2}, 4, v{V_LANE}')
    A(f'v_add_u32 v{V_T + 2}, {SCR - 1024}, v{V_T + 2}')
    A('s_waitcnt lgkmcnt(0)')
    A('s_barrier')
    P = F0

    def preg(nt, part, w):
        i = (nt * 2 + part) * 4 + w
        r = P + 4 * i
        if r + 3 >= XR:
            r += 16
        return r
    for nt in range(5):
        for w in range(4):
            r = preg(nt, 0, w)
            A(f'ds_read_b128 v[{r}:{r + 3}], v{V_T + (w >> 1)} offset:{(w & 1) * WREG + nt * 1024}')
    A('s_cmp_eq_u32 s34, 3')
    A(f's_cbranch_scc1 {name}_ex3')
    for nt in range(5):
        for w in range(4):
            r = preg(nt, 1, w)
            A(f'ds_read_b128 v[{r}:{r + 3}], v{V_T + (w >> 1)} offset:{(w & 1) * WREG + 20480 + nt * 1024}')
    A(f's_branch {name}_ex_done')
    A.label(f'{name}_ex3')
    for w in range(4):
        r = preg(0, 1, w)
        A(f'ds_read_b128 v[{r}:{r + 3}], v{V_T + (w >> 1)} offset:{(w & 1) * WREG + 20480}')
    for nt in range(1, 5):
        for w in range(4):
            r = preg(nt, 1, w)
            A(f'ds_read_b128 v[{r}:{r + 3}], v{V_T + 2} offset:{w * 4096 + nt * 1024}')
    A.label(f'{name}_ex_done')
    A(f's_mov_b32 s44, {NLOG2E}')
    A('s_waitcnt vmcnt(0) lgkmcnt(0)')
    for nt in range(5):
        xr = XR + 2 * nt
        xs = V_T + 8
        T1 = V_T + 3
        y = preg(nt, 0, 0)
        s = preg(nt, 1, 0)
        for i in range(4):
            A(f'v_add_f32 v{y + i}, v{y + i}, v{preg(nt, 0, 1) + i}')
        for i in range(4):
            A(f'v_add_f32 v{preg(nt, 0, 2) + i}, v{preg(nt, 0, 2) + i}, v{preg(nt, 0, 3) + i}')
        A(f'v_lshlrev_b32 v{xs}, 16, v{xr}')
        A(f'v_and_b32 v{xs + 1}, s64, v{xr}')
        A(f'v_lshlrev_b32 v{xs + 2}, 16, v{xr + 1}')
        A(f'v_and_b32 v{xs + 3}, s64, v{xr + 1}')
        for i in range(4):
            A(f'v_add_f32 v{y + i}, v{y + i}, v{preg(nt, 0, 2) + i}')
        for i in range(4):
            A(f'v_mul_f32 v{T1 + i}, s44, v{y + i}')
        for i in range(4):
            A(f'v_exp_f32 v{T1 + i}, v{T1 + i}')
        for i in range(4):
            A(f'v_add_f32 v{s + i}, v{s + i}, v{preg(nt, 1, 1) + i}')
        for i in range(4):
            A(f'v_add_f32 v{T1 + i}, 1.0, v{T1 + i}')
        for i in range(4):
            A(f'v_rcp_f32 v{T1 + i}, v{T1 + i}')
        for i in range(4):
            A(f'v_add_f32 v{preg(nt, 1, 2) + i}, v{preg(nt, 1, 2) + i}, v{preg(nt, 1, 3) + i}')
        for i in range(4):
            A(f'v_mul_f32 v{T1 + i}, v{T1 + i}, v{y + i}')
        for i in range(4):
            A(f'v_add_f32 v{s + i}, v{s + i}, v{preg(nt, 1, 2) + i}')
        for i in range(4):
            A(f'v_fma_f32 v{xs + i}, v{s + i}, v{T1 + i}, v{xs + i}')
        A(f'v_cvt_pk_bf16_f32 v{xr}, v{xs}, v{xs + 1}')
        A(f'v_cvt_pk_bf16_f32 v{xr + 1}, v{xs + 2}, v{xs + 3}')
        A(f'buffer_store_dwordx2 v[{xr}:{xr + 1}], v{V_X}, s[24:27], 0 offen offset:{nt * 32}')
    ST.dump(A)
    A.label(f'{name}_end')
    A('s_endpgm')
```

```python
import sys
from asmlib import Asm
from layout import *
import k1q as k1
import k2e as k2

NAME = "recurrent_scan__linear_attn_block__glu_gated_glu__prompt"
hdr = open(f"cdna_kernels/{NAME}.s.ref").read().split("; Override launch geometry")[0]

def kd(name, vgpr, accum, sgpr=102):
    return f""".p2align 6
.amdhsa_kernel {name}
  .amdhsa_next_free_vgpr {vgpr}
  .amdhsa_next_free_sgpr {sgpr}
  .amdhsa_accum_offset {accum}
  .amdhsa_group_segment_fixed_size 0
  .amdhsa_kernarg_size 80
  .amdhsa_user_sgpr_count 2
  .amdhsa_user_sgpr_kernarg_segment_ptr 1
  .amdhsa_system_sgpr_workgroup_id_x 1
.end_amdhsa_kernel
"""

A = Asm()
k1.gen_k1(A, "k1_kernel")
A3 = Asm()
k2.gen_k2(A3, "k2_kernel")
out = hdr
out += f"; @launch kernel=k1_kernel grid=(256,1,1) block=({k1.K1_BLOCK},1,1) lds={k1.K1_LDS}\n"
out += f"; @launch kernel=k2_kernel grid=(256,1,1) block=(256,1,1) lds={k2.K2_LDS}\n"
out += '.amdgcn_target "amdgcn-amd-amdhsa--gfx950"\n.text\n'
out += A.text() + A3.text()
out += '.section .rodata,"a"\n'
out += kd("k1_kernel", k1.K1_VGPR + k1.K1_AGPR, k1.K1_VGPR)
out += kd("k2_kernel", k2.K2_VGPR + k2.K2_AGPR, k2.K2_VGPR)
dst = sys.argv[1]
open(dst, "w").write(out)
print("nops:", A.nops, A3.nops, "bytes", len(out))
```

```python
from asmlib import Asm
from layout import *
import os
FL = os.environ.get('K1FLAGS', '').split(',')

LOG2E = 0x3fb8aa3b
NLOG2E = 0xbfb8aa3b
EPS6 = 0x358637bd
EPS5 = 0x3727c5ac
NSLOT = 5
XTRA = 160064
K1_LDS = XTRA + 2048
K1_BLOCK = 512

V_LANE, V_L31, V_HF = 1, 2, 3
VP = 4
VXA = 28
VWA = 11
VXC = 13
VWC = 15
V_OUT = 17
V_FLG = 18
V_T = 19
ACC = 32
ST = 128
TMP = 192
K1_VGPR = 208
K1_AGPR = 48
UPOFF = 6144 + 32

PATHS = {
    'gu': dict(NX=2, NW=3, tr=True, RG=12, stride=3456, NPX=4, NPW=3, XS=32768, WS=12352),
    'q': dict(NX=2, NW=2, tr=True, RG=16, stride=3840, NPX=4, NPW=2, XS=32768, WS=8192),
    'kv': dict(NX=1, NW=5, tr=False, RG=20, stride=3840, NPX=2, NPW=5, XS=16384, WS=20480),
}


STAMP = 'stamp' in FL
WT = ' sc1' if 'wt' in FL else ''
WTD = ' sc1' if 'wtd' in FL else ''
EARLY = 'early' in FL
FUSED = False
ROT = 'rot' in FL
BLK = True
_sn = [0]


def stamp(A, reset=None):
    if not STAMP:
        return
    if reset is not None:
        _sn[0] = reset
    i = _sn[0]
    _sn[0] += 1
    A(f's_memtime s[{72 + 2 * i}:{73 + 2 * i}]')


def stamp_dump(A):
    if not STAMP:
        return
    stamp(A)
    n = _sn[0]
    A('s_waitcnt lgkmcnt(0)')
    A('s_lshl_b32 s42, s2, 3'); A('s_add_u32 s42, s42, s32'); A('s_lshl_b32 s42, s42, 9')
    A(f's_add_u32 s42, s42, {16 << 20}')
    A(f's_mov_b32 s22, {32 << 20}')
    A('s_mov_b64 exec, 1')
    for i in range(n):
        A(f'v_mov_b32 v{V_T + 1}, s{72 + 2 * i}'); A(f'v_mov_b32 v{V_T + 2}, s{73 + 2 * i}')
        A(f'buffer_store_dwordx2 v[{V_T + 1}:{V_T + 2}], off, s[20:23], s42 offset:{8 * i}')
        A('s_nop 2')
    A('s_mov_b64 exec, -1')


def phi_ops(dst, src, t1):
    return [f'v_mul_f32 v{t1}, s44, v{src}',
            f'v_min_f32 v{t1}, 0, v{t1}',
            f'v_exp_f32 v{t1}, v{t1}',
            f'v_max_f32 v{dst}, 0, v{src}',
            f'v_add_f32 v{dst}, v{dst}, v{t1}',
            f'v_add_f32 v{dst}, s45, v{dst}']


def phi2_ops(a, t, C, R):
    return [f'v_min_f32 v{t}, 0, v{a}',
            f'v_mul_f32 v{t}, v{C}, v{t}',
            f'v_exp_f32 v{t}, v{t}',
            f'v_max_f32 v{a}, 0, v{a}',
            f'v_fma_f32 v{a}, v{R}, v{a}, s45',
            f'v_add_f32 v{a}, v{a}, v{t}']


def allred(regs, rors, t):
    o = []
    for r in rors:
        for x in regs:
            o.append(f'v_add_f32_dpp v{x}, v{x}, v{x} row_ror:{r} row_mask:0xf bank_mask:0xf')
    for sw in ('v_permlane16_swap_b32', 'v_permlane32_swap_b32'):
        for i, x in enumerate(regs):
            o.append(f'v_mov_b32 v{t + i}, v{x}')
        for i, x in enumerate(regs):
            o.append(f'{sw} v{x}, v{t + i}')
        for i, x in enumerate(regs):
            o.append(f'v_add_f32 v{x}, v{x}, v{t + i}')
    return o


CST = []
for b1, n1, b2, n2, b3, n3 in zip([30, 36, 42, 48, 54, 4, 13, 17], [6, 6, 6, 6, 3, 6, 4, 3],
                                  [57, 63, 69, 75, 81, 10, 23, 27], [6, 6, 6, 6, 3, 3, 4, 3],
                                  [12, 12, 12, 12, 0, 20, 8, 6], [0, 0, 0, 0, 4, 3, 0, 0]):
    CST.append(b1 | (n1 << 7) | ((b2 - n1) << 10) | ((n1 + n2) << 17) | ((b3 - n1 - n2 + 8) << 21) | ((n1 + n2 + n3) << 26))
CSH = 5376 * 4


def gen_k1(A, name):
    A.raw(f'.globl {name}')
    A.raw('.p2align 8')
    A.raw(f'.type {name},@function')
    A.label(name)
    A('s_cmp_ge_u32 s2, 256')
    A(f's_cbranch_scc1 {name}_end')
    stamp(A, 0)
    A('s_load_dwordx4 s[4:7], s[0:1], 0')
    A('s_load_dwordx4 s[8:11], s[0:1], 32')
    A('s_load_dwordx2 s[14:15], s[0:1], 48')
    A('s_load_dwordx4 s[64:67], s[0:1], 64')
    A(f'v_and_b32 v{V_LANE}, 63, v0')
    A(f'v_lshrrev_b32 v{V_T}, 6, v0')
    A(f'v_and_b32 v{V_L31}, 31, v0')
    A(f'v_readfirstlane_b32 s32, v{V_T}')
    A(f'v_bfe_u32 v{V_HF}, v0, 5, 1')
    A('s_and_b32 s42, s2, 7')
    A('s_lshr_b32 s43, s2, 3')
    A('s_and_b32 s34, s43, 7')
    A('s_lshr_b32 s43, s43, 3')
    A('s_lshl_b32 s33, s42, 2')
    A('s_add_u32 s33, s33, s43')
    A(f'v_lshlrev_b32 v{V_T}, 2, v{V_LANE}')
    A('s_lshl_b32 s49, s2, 3')
    A('s_add_u32 s49, s49, s32')
    A('s_mul_i32 s48, s49, 1280')
    A('s_waitcnt lgkmcnt(0)')
    A('s_mov_b32 s24, s4'); A('s_and_b32 s25, s5, 0xffff'); A(f's_mov_b32 s26, {2048 * 1280}'); A('s_mov_b32 s27, 0x20000')
    A('s_mov_b32 s20, s66'); A('s_and_b32 s21, s67, 0xffff'); A(f's_mov_b32 s22, {WS_END}'); A('s_mov_b32 s23, 0x20000')
    A('s_and_b32 s7, s7, 0xffff'); A('s_and_b32 s9, s9, 0xffff'); A('s_and_b32 s11, s11, 0xffff')
    RSL = ST
    CSL = ST + 8
    CSA = ST + 32
    A(f's_mov_b32 s44, {LOG2E}'); A(f's_mov_b32 s45, {EPS6}')
    A('s_and_b32 s65, s65, 0xffff'); A('s_movk_i32 s66, 256'); A('s_mov_b32 s67, 0x20000')
    A('s_cmp_eq_u32 s32, 7')
    A('s_cselect_b32 s60, 4, -1')
    A('s_cmp_lt_u32 s33, 18')
    A(f's_cbranch_scc1 {name}_gu')
    A('s_cmp_lt_u32 s33, 23')
    A(f's_cbranch_scc1 {name}_q')
    A('s_cmp_lt_u32 s33, 31')
    A(f's_cbranch_scc1 {name}_kv')
    lbl = [0]

    def newl(s):
        lbl[0] += 1
        return f'{name}_{s}{lbl[0]}'

    def stats_setup():
        A('s_and_b32 s42, s2, 7')
        A(f's_mov_b32 s43, {CST[0]}')
        for j in range(1, 8):
            A(f's_cmp_eq_u32 s42, {j}')
            A(f's_cselect_b32 s43, {CST[j]}, s43')
        A('s_lshr_b32 s42, s2, 4')
        A('s_bfe_u32 s50, s43, 0x50015')
        A('s_sub_u32 s50, s50, 8')
        A('s_bfe_u32 s52, s43, 0x40011')
        A('s_bfe_u32 s47, s43, 0x7000a')
        A('s_cmp_lt_u32 s42, s52')
        A('s_cselect_b32 s50, s47, s50')
        A('s_bfe_u32 s52, s43, 0x30007')
        A('s_and_b32 s47, s43, 127')
        A('s_cmp_lt_u32 s42, s52')
        A('s_cselect_b32 s50, s47, s50')
        A('s_add_u32 s50, s50, s42')
        A('s_bfe_u32 s52, s43, 0x4001a')
        A('s_cmp_lt_u32 s42, s52')
        A('s_cselect_b32 s63, 1, 0')
        A('s_cselect_b32 s50, s50, 0')
        A('s_bfe_u32 s52, s2, 0x10003')
        A(f's_mul_i32 s62, s52, {CSH}')
        A('s_lshl_b32 s42, s50, 8')
        A('s_add_u32 s62, s62, s42')
        A(f's_add_u32 s62, s62, {OFF_CS}')
        A('s_sub_u32 s42, s50, 30'); A('s_sub_u32 s43, s50, 57')
        A('s_cmp_lt_u32 s50, 57')
        A('s_cselect_b32 s28, s8, s10'); A('s_cselect_b32 s29, s9, s11'); A('s_cselect_b32 s42, s42, s43')
        A('s_cmp_lt_u32 s50, 30')
        A('s_cselect_b32 s28, s6, s28'); A('s_cselect_b32 s29, s7, s29'); A('s_cselect_b32 s42, s50, s42')
        A('s_mov_b32 s43, 3456'); A('s_cselect_b32 s43, 3840, s43')
        A('s_mul_i32 s30, s43, 640'); A('s_mul_i32 s30, s30, s63'); A('s_mov_b32 s31, 0x20000')
        A('s_lshl_b32 s68, s42, 7')
        A('s_mul_i32 s50, s32, 40'); A('s_mul_i32 s52, s52, 320'); A('s_add_u32 s50, s50, s52')
        A(f'v_lshrrev_b32 v{V_T + 7}, 3, v{V_LANE}')
        A(f'v_add_u32 v{V_T + 7}, s50, v{V_T + 7}')
        A(f'v_mul_lo_u32 v{V_T + 7}, v{V_T + 7}, s43')
        A(f'v_and_b32 v{V_T + 8}, 7, v{V_LANE}')
        A(f'v_lshl_add_u32 v{V_T + 7}, v{V_T + 8}, 4, v{V_T + 7}')
        A(f'v_lshlrev_b32 v{V_T + 8}, 2, v{V_LANE}')
        A('s_lshl_b32 s69, s43, 3')

    def stats_loads():
        g = []
        for i in range(5):
            g.append([f'buffer_load_dword v{RSL + i}, v{V_T + 8}, s[24:27], s48 offen offset:{256 * i}'])
        for p in range(5):
            g.append([f'buffer_load_dwordx4 v[{CSL + 4 * p}:{CSL + 4 * p + 3}], v{V_T + 7}, s[28:31], s68 offen',
                      's_add_u32 s68, s68, s69'])
        return g

    def stats_compute():
        o = []
        a0, a1 = V_T, V_T + 1
        o += ['s_mov_b32 s42, 0x00003f80', 's_mov_b32 s43, 0x3f800000', 's_mov_b32 s50, 0x3f803f80']
        for i in range(5):
            o.append(f'v_dot2_f32_bf16 v{a0}, v{RSL + i}, s50, {"0" if i == 0 else f"v{a0}"}')
            o.append(f'v_dot2_f32_bf16 v{a1}, v{RSL + i}, v{RSL + i}, {"0" if i == 0 else f"v{a1}"}')
        cs = []
        for p in range(5):
            for e in range(4):
                cs.append(f'v_dot2_f32_bf16 v{CSA + 2 * e}, v{CSL + 4 * p + e}, s42, {"0" if p == 0 else f"v{CSA + 2 * e}"}')
                cs.append(f'v_dot2_f32_bf16 v{CSA + 2 * e + 1}, v{CSL + 4 * p + e}, s43, {"0" if p == 0 else f"v{CSA + 2 * e + 1}"}')
        rw = allred([a0, a1], (8, 4, 2, 1), V_T + 4)
        rw += ['s_mov_b32 s50, 0x3acccccd',
               f'v_mul_f32 v{a0}, s50, v{a0}',
               f'v_mul_f32 v{a1}, s50, v{a1}',
               f'v_fma_f32 v{a1}, -v{a0}, v{a0}, v{a1}',
               f'v_max_f32 v{a1}, 0, v{a1}',
               f'v_add_f32 v{a1}, {EPS5}, v{a1}',
               f'v_rsq_f32 v{a1}, v{a1}',
               f'v_sub_f32 v{a0}, 0, v{a0}',
               's_lshl_b32 s50, s49, 2',
               f's_add_u32 s50, s50, {OFF_RS}',
               's_add_u32 s52, s50, 8192']
        k = 0
        for i, x in enumerate(rw):
            o.append(x)
            want = (len(cs) * (i + 1)) // len(rw)
            while k < want:
                o.append(cs[k]); k += 1
        g = [[x] for x in o]
        g.append(['s_mov_b64 exec, 1',
                  f'buffer_store_dword v{a1}, off, s[20:23], s50 sc1',
                  f'buffer_store_dword v{a0}, off, s[20:23], s52 sc1',
                  's_mov_b64 exec, -1'])
        o = allred([CSA + e for e in range(8)], (8,), CSA + 8)
        o += [f'v_and_b32 v{V_T}, 7, v{V_LANE}',
              f'v_lshlrev_b32 v{V_T}, 5, v{V_T}',
              's_lshl_b32 s42, s32, 8',
              f's_add_u32 s42, s42, {XTRA}',
              f'v_add_u32 v{V_T}, s42, v{V_T}',
              f'ds_write_b128 v{V_T}, v[{CSA}:{CSA + 3}]',
              f'ds_write_b128 v{V_T}, v[{CSA + 4}:{CSA + 7}] offset:16']
        g += [[x] for x in o]
        return g

    def cs_phase2():
        l = newl('nop2')
        A('s_cmp_lg_u32 s32, 7')
        A(f's_cbranch_scc1 {l}')
        A('s_cmp_eq_u32 s63, 0')
        A(f's_cbranch_scc1 {l}')
        A(f'v_add_u32 v{V_T + 1}, {XTRA}, v{V_T + 8}')
        for u in range(8):
            A(f'ds_read_b32 v{CSA + u}, v{V_T + 1} offset:{256 * u}')
        A('s_waitcnt lgkmcnt(0)')
        for u in range(1, 8):
            A(f'v_add_f32 v{CSA}, v{CSA}, v{CSA + u}')
        A(f'buffer_store_dword v{CSA}, v{V_T + 8}, s[20:23], s62 offen sc1')
        A.flush(4)
        A.label(l)

    WDR = ACC + 64

    def wd_loads():
        A('s_mov_b32 s28, s14'); A('s_and_b32 s29, s15, 0xffff'); A(f's_mov_b32 s30, {1728 * 1280}'); A('s_mov_b32 s31, 0x20000')
        A('s_mul_i32 s51, s51, 36')
        A('s_mul_i32 s42, s51, 1280')
        A(f'v_lshlrev_b32 v{V_T}, 4, v0')
        for i in range(6):
            A(f'buffer_load_dwordx4 v[{WDR + 4 * i}:{WDR + 4 * i + 3}], v{V_T}, s[28:31], s42 offen')
            if i < 5:
                A('s_add_u32 s42, s42, 8192')
        return 6

    def wd_stores():
        A('s_mul_i32 s52, s51, 160')
        A(f's_add_u32 s52, s52, {OFF_WD}')
        A('s_mov_b32 s42, 52429'); A('s_movk_i32 s43, 6554'); A(f's_mov_b32 s48, {1728 * 160}')
        for i in range(6):
            t = V_T
            A(f'v_add_u32 v{t}, {512 * i}, v0')
            A(f'v_mul_u32_u24 v{t + 1}, s42, v{t}')
            A(f'v_lshrrev_b32 v{t + 1}, 22, v{t + 1}')
            A(f'v_mul_u32_u24 v{t + 2}, 80, v{t + 1}')
            A(f'v_sub_u32 v{t}, v{t}, v{t + 2}')
            A(f'v_mul_u32_u24 v{t + 2}, s43, v{t}')
            A(f'v_lshrrev_b32 v{t + 2}, 16, v{t + 2}')
            A(f'v_mul_u32_u24 v{t + 3}, 10, v{t + 2}')
            A(f'v_sub_u32 v{t}, v{t}, v{t + 3}')
            A(f'v_mul_u32_u24 v{t + 2}, s48, v{t + 2}')
            A(f'v_mul_u32_u24 v{t + 1}, 160, v{t + 1}')
            A(f'v_lshl_add_u32 v{t}, v{t}, 4, v{t + 1}')
            A(f'v_add_u32 v{t + 4 + i}, v{t}, v{t + 2}')
        for i in range(6):
            if i == 5:
                A('v_cmp_gt_u32 vcc, 320, v0')
                A('s_and_saveexec_b64 s[70:71], vcc')
            A(f'buffer_store_dwordx4 v[{WDR + 4 * i}:{WDR + 4 * i + 3}], v{V_T + 4 + i}, s[20:23], s52 offen{WTD}')
        A('s_mov_b64 exec, -1')

    def zero_k2_flags():
        l = newl('nz')
        A('s_cmp_lg_u32 s2, 0')
        A(f's_cbranch_scc1 {l}')
        A('s_cmp_ge_u32 s32, 4')
        A(f's_cbranch_scc1 {l}')
        for i in range(4):
            A(f'v_mov_b32 v{TMP + i}, 0')
        A(f'v_lshlrev_b32 v{V_T}, 4, v0')
        A(f's_mov_b32 s42, {OFF_FLG}')
        A(f'buffer_store_dwordx4 v[{TMP}:{TMP + 3}], v{V_T}, s[20:23], s42 offen')
        A.flush(4)
        A.label(l)

    def publish():
        A(f'v_mov_b32 v{V_T}, 1')
        A('s_mov_b64 exec, 1')
        A(f'buffer_store_byte v{V_T}, off, s[64:67], s2 sc1')
        A('s_mov_b64 exec, -1')

    stats_setup()
    for g in stats_loads():
        for x in g:
            A(x)
    CB = ACC
    CRB, CRB4, CST_ = ACC + 5, ACC + 6, ACC + 7
    CF = ACC + 8
    A('s_mov_b32 s16, s14'); A('s_and_b32 s17, s15, 0xffff'); A(f's_mov_b32 s18, {1728 * 1280}'); A('s_mov_b32 s19, 0x20000')
    A('s_movk_i32 s47, 6554')
    for ii in range(5):
        t = V_T
        A(f'v_add_u32 v{t}, {64 * ii}, v{V_LANE}')
        A(f'v_mul_lo_u32 v{t + 1}, v{t}, s47')
        A(f'v_lshrrev_b32 v{t + 1}, 16, v{t + 1}')
        A(f'v_mul_u32_u24 v{t + 2}, 10, v{t + 1}')
        A(f'v_sub_u32 v{t + 2}, v{t}, v{t + 2}')
        A(f'v_bfe_u32 v{t + 3}, v{t + 1}, 3, 1')
        A(f'v_lshlrev_b32 v{t + 3}, 1, v{t + 3}')
        A(f'v_sub_u32 v{t + 2}, v{t + 2}, v{t + 3}')
        A(f'v_add_u32 v{t + 3}, 10, v{t + 2}')
        A(f'v_cmp_gt_i32 vcc, 0, v{t + 2}')
        A(f'v_cndmask_b32 v{t + 2}, v{t + 2}, v{t + 3}, vcc')
        A(f'v_lshlrev_b32 v{t + 2}, 4, v{t + 2}')
        A(f'v_mul_u32_u24 v{t + 1}, 1280, v{t + 1}')
        A(f'v_add_u32 v{CB + ii}, v{t + 1}, v{t + 2}')
    A('s_mul_i32 s35, s32, 10240')
    A(f's_mul_i32 s36, s32, {64 * 1280}')
    A('s_mul_i32 s42, s34, 160')
    A('s_add_u32 s36, s36, s42')
    A(f's_mul_i32 s37, s34, {1728 * 160}')
    A('s_add_u32 s37, s37, s35')
    A(f's_add_u32 s37, s37, {OFF_WD}')
    A('s_cmp_lt_u32 s32, 3')
    A('s_cselect_b32 s38, 4, 3')

    def cp_dma():
        for u in range(10):
            if u == 5:
                A(f's_add_u32 s36, s36, {32 * 1280}')
            A(f's_add_u32 m0, s35, {u * 1024}')
            A(f'buffer_load_dwordx4 v{CB + u % 5}, s[16:19], s36 offen lds')
        A(f's_add_u32 s36, s36, {(512 - 32) * 1280}')
    cp_dma()
    t = V_T
    A(f'v_lshrrev_b32 v{t + 1}, 4, v{V_LANE}')
    A(f'v_bfe_u32 v{t + 2}, v{V_LANE}, 2, 2')
    A(f'v_lshl_add_u32 v{t + 2}, v{t + 1}, 3, v{t + 2}')
    A(f'v_mul_u32_u24 v{t + 2}, 160, v{t + 2}')
    A(f'v_bfe_u32 v{t + 3}, v{V_LANE}, 1, 1')
    A(f'v_bfe_u32 v{t + 4}, v{V_LANE}, 4, 1')
    A(f'v_lshl_add_u32 v{t + 3}, v{t + 4}, 1, v{t + 3}')
    A(f'v_lshl_add_u32 v{t + 2}, v{t + 3}, 4, v{t + 2}')
    A(f'v_and_b32 v{t + 3}, 1, v{V_LANE}')
    A(f'v_lshl_add_u32 v{t + 2}, v{t + 3}, 3, v{t + 2}')
    A(f'v_add_u32 v{CRB}, s35, v{t + 2}')
    A(f'v_mul_u32_u24 v{t + 3}, 160, v{t + 4}')
    A(f'v_add_u32 v{CRB4}, 128, v{CRB}')
    A(f'v_sub_u32 v{CRB4}, v{CRB4}, v{t + 3}')
    A(f'v_lshlrev_b32 v{CST_}, 4, v{V_LANE}')
    A('s_waitcnt vmcnt(10)')
    for g in stats_compute():
        for x in g:
            A(x)
    A('s_waitcnt vmcnt(0) lgkmcnt(0)')
    A('s_barrier')
    if not FUSED:
        l = newl('sp')
        A('s_cmp_lg_u32 s32, 7')
        A(f's_cbranch_scc1 {l}')
        publish()
        A.flush(4)
        A.label(l)
    lp = newl('cpl')
    A.flush(4)
    A.label(lp)
    A('s_waitcnt vmcnt(0)')
    for ks in range(2):
        for nt in range(5):
            f = CF + 20 * ks + 4 * nt
            if nt < 4:
                A(f'ds_read_b64_tr_b16 v[{f}:{f + 1}], v{CRB} offset:{ks * 5120 + 32 * nt}')
                A(f'ds_read_b64_tr_b16 v[{f + 2}:{f + 3}], v{CRB} offset:{ks * 5120 + 640 + 32 * nt}')
            else:
                A(f'ds_read_b64_tr_b16 v[{f}:{f + 1}], v{CRB4} offset:{ks * 5120}')
                A(f'ds_read_b64_tr_b16 v[{f + 2}:{f + 3}], v{CRB4} offset:{ks * 5120 + 640}')
    A('s_sub_u32 s38, s38, 1')
    A('s_waitcnt lgkmcnt(0)')
    l = newl('cpn')
    A('s_cmp_eq_u32 s38, 0')
    A(f's_cbranch_scc1 {l}')
    cp_dma()
    A.label(l)
    for j in range(10):
        if j in (4, 8):
            A('s_add_u32 s37, s37, 4096')
        A(f'buffer_store_dwordx4 v[{CF + 4 * j}:{CF + 4 * j + 3}], v{CST_}, s[20:23], s37 offen offset:{1024 * (j % 4)}{WT}')
    A(f's_add_u32 s37, s37, {81920 - 8192}')
    A('s_cmp_lg_u32 s38, 0')
    A.flush(4)
    A(f's_cbranch_scc1 {lp}')
    A('s_endpgm')

    def gen_path(pn):
        P = PATHS[pn]
        NX, NW, TR, RG, STRIDE, XS, WS = P['NX'], P['NW'], P['tr'], P['RG'], P['stride'], P['XS'], P['WS']
        XB = 3 * XS
        assert XB + NSLOT * WS <= XTRA
        XF = lambda b, xt: b * 4 * NX + 4 * xt
        WF = lambda b, t: 8 * NX + b * 4 * NW + 4 * t
        AC = lambda xt, t: ACC + 16 * (xt * NW + t)
        A.label(f'{name}_{pn}')
        if pn == 'gu':
            A('s_mov_b32 s36, s33'); A('s_lshl_b32 s35, s34, 8')
        elif pn == 'q':
            A('s_sub_u32 s36, s33, 18'); A('s_lshl_b32 s35, s34, 8')
            A('s_lshl_b32 s51, s36, 3'); A('s_add_u32 s51, s51, s34')
        else:
            A('s_sub_u32 s42, s33, 23'); A('s_lshr_b32 s36, s42, 1')
            A('s_and_b32 s42, s42, 1'); A('s_lshl_b32 s42, s42, 3'); A('s_add_u32 s53, s42, s34')
            A('s_lshl_b32 s35, s53, 7')
        A('s_and_b32 s54, s32, 3')
        A('s_lshr_b32 s55, s32, 2')
        A('s_cmp_ge_u32 s32, 4')
        A(f's_cbranch_scc1 {name}_{pn}_w')

        def rd_setup():
            A(f's_lshl_b32 s42, s54, {13 if NX == 2 else 12}')
            A(f'v_bfe_u32 v{V_T}, v{V_L31}, 1, 3')
            A(f'v_xor_b32 v{V_T}, v{V_T}, v{V_HF}')
            A(f'v_lshlrev_b32 v{V_T + 1}, 7, v{V_L31}')
            A(f'v_add_u32 v{V_T + 1}, s42, v{V_T + 1}')
            A(f'v_lshl_add_u32 v{VXA}, v{V_T}, 4, v{V_T + 1}')
            for j in range(1, 4):
                A(f'v_xor_b32 v{VXA + j}, {32 * j}, v{VXA}')
            pitch = RG * 16
            A(f'v_bfe_u32 v{V_T}, v{V_LANE}, 2, 2')
            A(f'v_and_b32 v{V_T + 1}, 3, v{V_LANE}')
            A(f'v_lshlrev_b32 v{V_T + 1}, 3, v{V_T + 1}')
            A(f'v_mul_u32_u24 v{V_T + 2}, {pitch}, v{V_T}')
            A(f'v_add_u32 v{V_T + 1}, v{V_T + 1}, v{V_T + 2}')
            A(f'v_mul_u32_u24 v{V_T + 2}, {8 * pitch}, v{V_HF}')
            A(f'v_add_u32 v{V_T + 1}, v{V_T + 1}, v{V_T + 2}')
            A(f'v_bfe_u32 v{V_T + 2}, v{V_LANE}, 4, 1')
            A(f'v_mul_u32_u24 v{V_T + 2}, {UPOFF if pn == "gu" else 32}, v{V_T + 2}')
            A(f'v_add_u32 v{V_T + 1}, v{V_T + 1}, v{V_T + 2}')
            if pn == 'gu':
                A('s_mul_i32 s42, s55, 96'); A(f's_add_u32 s42, s42, {XB}')
                A(f'v_add_u32 v{VWA}, s42, v{V_T + 1}')
            elif pn == 'kv':
                A('s_mul_i32 s42, s55, 10240'); A(f's_add_u32 s42, s42, {XB}')
                A(f'v_add_u32 v{VWA}, s42, v{V_T + 1}')
            else:
                A('s_lshl_b32 s42, s55, 1')
                for tt in range(2):
                    A(f'v_add_u32 v{V_T + 2}, s42, v{V_T}')
                    if tt:
                        A(f'v_add_u32 v{V_T + 2}, 1, v{V_T + 2}')
                    A(f'v_and_b32 v{V_T + 2}, 3, v{V_T + 2}')
                    A(f'v_lshl_add_u32 v{V_T + 2}, v{V_T + 2}, 6, v{V_T + 1}')
                    A(f'v_add_u32 v{VWA + tt}, {XB}, v{V_T + 2}')

        NWA = 2 if pn == 'q' else 1

        def rd_ptr(par):
            return [f'v_add_u32 v{VXC + i}, s61, v{VXA + 2 * par + i}' for i in range(2)] + \
                   [f'v_add_u32 v{VWC + i}, s39, v{VWA + i}' for i in range(NWA)]

        def reads(b, q):
            ops = []
            for xt in range(NX):
                f = XF(b, xt)
                ops.append(f'ds_read_b128 a[{f}:{f + 3}], v{VXC + q} offset:{4096 * xt}')
            pitch = RG * 16
            for t in range(NW):
                f = WF(b, t)
                if pn == 'q':
                    ad, o = VWC + t, q * 16 * pitch
                elif pn == 'gu':
                    ad, o = VWC, q * 16 * pitch + 32 * t
                else:
                    ad, o = VWC, q * 16 * pitch + 64 * t
                ops.append(f'ds_read_b64_tr_b16 a[{f}:{f + 1}], v{ad} offset:{o}')
                ops.append(f'ds_read_b64_tr_b16 a[{f + 2}:{f + 3}], v{ad} offset:{o + 4 * pitch}')
            return ops

        def mfmas(b, first=False):
            ops = []
            for t in range(NW):
                for xt in range(NX):
                    a = AC(xt, t)
                    x, w = XF(b, xt), WF(b, t)
                    c = '0' if first else f'v[{a}:{a + 15}]'
                    if TR:
                        ops.append(f'v_mfma_f32_32x32x16_bf16 v[{a}:{a + 15}], a[{w}:{w + 3}], a[{x}:{x + 3}], {c}')
                    else:
                        ops.append(f'v_mfma_f32_32x32x16_bf16 v[{a}:{a + 15}], a[{x}:{x + 3}], a[{w}:{w + 3}], {c}')
            return ops

        def dma(NP):
            gs = []
            for p in range(NP):
                gs.append([f's_add_u32 m0, s40, {1024 * p}',
                           f'buffer_load_dwordx4 v{VP + p}, s[16:19], s37 offen lds'])
            return gs

        def adv_wr(r, par):
            if r == 'w':
                wr = [f's_sub_u32 s70, s37, {640 * STRIDE}', f's_cmp_ge_u32 s37, {640 * STRIDE}', 's_cselect_b32 s37, s70, s37'] if ROT and par else []
                return ['s_add_u32 s37, s37, s38'] + wr + [
                        f's_add_u32 s40, s40, {WS}',
                        's_cmp_ge_u32 s40, s56',
                        's_cselect_b32 s40, s46, s40']
            hr = 16 * NX
            if par == 0:
                return [f's_add_u32 s37, s37, {hr * 1280}', f's_add_u32 s40, s40, {hr * 128}']
            wr = ['s_sub_u32 s70, s37, 1280', 's_cmp_ge_u32 s37, s38', 's_cselect_b32 s37, s70, s37'] if ROT else []
            return [f's_sub_u32 s37, s37, {hr * 1280 - 128}'] + wr + [
                    f's_add_u32 s40, s40, {XS - hr * 128}',
                    's_cmp_ge_u32 s40, s56',
                    's_cselect_b32 s40, s46, s40']

        def adv_rd(par):
            ops = [f's_add_u32 s39, s39, {WS}',
                   f's_cmp_ge_u32 s39, {NSLOT * WS}',
                   's_cselect_b32 s39, 0, s39']
            if par == 1:
                ops += [f's_add_u32 s61, s61, {XS}',
                        f's_cmp_ge_u32 s61, {3 * XS}',
                        's_cselect_b32 s61, 0, s61']
            return ops

        fill = dict(q=[], slots=0)

        def interleave(ms, early, late=()):
            n = len(ms)
            ne = (n + 1) // 2
            de = dl = 0
            for i, m in enumerate(ms):
                A(m)
                if i < ne:
                    want = (len(early) * (i + 1) + ne - 1) // ne
                    while de < want:
                        for x in early[de]:
                            A(x)
                        de += 1
                if i >= ne - 1:
                    want = (len(late) * (i - ne + 2) + (n - ne + 1) - 1) // (n - ne + 1)
                    while dl < min(want, len(late)):
                        for x in late[dl]:
                            A(x)
                        dl += 1
                if fill['q']:
                    k = (len(fill['q']) + fill['slots'] - 1) // fill['slots']
                    for g in fill['q'][:k]:
                        for x in g:
                            A(x)
                    fill['q'] = fill['q'][k:]
                    fill['slots'] -= 1
            assert de == len(early) and dl == len(late)

        def half_stage(r, par, NP, nwait, barrier=True, nxt=True, do_dma=True, mid=None, first=False):
            A('s_waitcnt lgkmcnt(0)')
            interleave(mfmas(0, first), [[r] for r in reads(1, 1)])
            if barrier:
                if nwait is None:
                    A('s_waitcnt lgkmcnt(0)')
                else:
                    A(f's_waitcnt vmcnt({nwait}) lgkmcnt(0)')
                A('s_barrier')
            else:
                A('s_waitcnt lgkmcnt(0)')
            if mid:
                mid()
            gs, gl = [], []
            if nxt:
                for x in adv_rd(par) + rd_ptr(1 - par):
                    A(x)
                gs += [[r] for r in reads(0, 0)]
            if do_dma:
                gl += dma(NP) + [adv_wr(r, par)]
            interleave(mfmas(1), gs, gl)

        SR, SNM, SCS = ST + 48, ST + 50, ST + 52
        NMF, CSF = ST + 16, ST + 24

        def stat_loads():
            A(f'v_lshlrev_b32 v{V_T}, 2, v{V_L31}')
            A(f'v_mul_u32_u24 v{V_T + 2}, {CSH}, v{V_HF}')
            if TR:
                A('s_lshl_b32 s42, s54, 6'); A('s_add_u32 s42, s42, s35'); A('s_lshl_b32 s42, s42, 2')
                A(f's_add_u32 s42, s42, {OFF_RS}'); A('s_add_u32 s43, s42, 8192')
                for xt in range(2):
                    A(f'buffer_load_dword v{SR + xt}, v{V_T}, s[20:23], s42 offen offset:{128 * xt} sc1')
                    A(f'buffer_load_dword v{SNM + xt}, v{V_T}, s[20:23], s43 offen offset:{128 * xt} sc1')
                if pn == 'gu':
                    A(f'v_and_b32 v{V_T + 1}, 15, v{V_LANE}')
                    A(f'v_lshl_add_u32 v{V_T + 2}, v{V_T + 1}, 2, v{V_T + 2}')
                    A(f'v_bfe_u32 v{V_T + 1}, v{V_LANE}, 4, 1')
                    A(f'v_mul_u32_u24 v{V_T + 1}, {1728 * 4}, v{V_T + 1}')
                    A(f'v_add_u32 v{V_T + 2}, v{V_T + 1}, v{V_T + 2}')
                    A('s_mul_i32 s42, s36, 384'); A('s_mul_i32 s43, s55, 192'); A('s_add_u32 s42, s42, s43')
                    A(f's_add_u32 s42, s42, {OFF_CS + 1920 * 4}')
                    for t in range(3):
                        A(f'buffer_load_dword v{SCS + t}, v{V_T + 2}, s[20:23], s42 offen offset:{64 * t} sc1')
                else:
                    A(f'v_add_u32 v{V_T + 2}, v{V_T}, v{V_T + 2}')
                    A('s_lshl_b32 s42, s36, 9'); A('s_lshl_b32 s43, s55, 8'); A('s_add_u32 s42, s42, s43')
                    A(f's_add_u32 s42, s42, {OFF_CS}')
                    for t in range(2):
                        A(f'buffer_load_dword v{SCS + t}, v{V_T + 2}, s[20:23], s42 offen offset:{128 * t} sc1')
            else:
                A('s_lshl_b32 s42, s54, 5'); A('s_add_u32 s42, s42, s35'); A('s_lshl_b32 s42, s42, 2')
                A(f's_add_u32 s42, s42, {OFF_RS}'); A('s_add_u32 s43, s42, 8192')
                A(f'v_lshlrev_b32 v{V_T + 1}, 4, v{V_HF}')
                A(f'v_add_u32 v{V_T + 2}, v{V_T}, v{V_T + 2}')
                A(f'buffer_load_dword v{SNM}, v{V_T}, s[20:23], s43 offen sc1')
                for j in range(4):
                    A(f'buffer_load_dwordx4 v[{ST + 4 * j}:{ST + 4 * j + 3}], v{V_T + 1}, s[20:23], s42 offen offset:{32 * j} sc1')
                A('s_mul_i32 s42, s36, 640'); A('s_mul_i32 s43, s55, 2560'); A('s_add_u32 s42, s42, s43')
                A(f's_add_u32 s42, s42, {OFF_CS + 640 * 4}')
                for t in range(5):
                    A(f'buffer_load_dword v{SCS + t}, v{V_T + 2}, s[20:23], s42 offen offset:{128 * t} sc1')

        def flag_load():
            A(f'v_lshlrev_b32 v{V_T + 3}, 2, v{V_LANE}')
            A(f'buffer_load_dword v{V_FLG}, v{V_T + 3}, s[64:67], 0 offen sc1')

        def flag_test():
            A(f'v_cmp_ne_u32 vcc, 0x01010101, v{V_FLG}')
            A('s_nop 4')
            A('s_cmp_eq_u64 vcc, 0')

        def flag_check():
            no = newl('fno')
            A('s_mov_b32 s59, 0')
            flag_test()
            A(f's_cbranch_scc0 {no}')
            A('s_mov_b32 s59, 0x7fffffff')
            stat_loads()
            A.flush(6)
            A.label(no)

        def flag_slow():
            ok, again = newl('fok'), newl('fag')
            A('s_cmp_lg_u32 s59, 0')
            A(f's_cbranch_scc1 {ok}')
            A.label(again)
            A('s_sleep 24')
            flag_load()
            A('s_add_u32 s59, s59, 1')
            A('s_waitcnt vmcnt(0)')
            flag_test()
            A('s_cselect_b32 s59, 0x7fffffff, s59')
            A('s_cmp_lt_u32 s59, 0x8000')
            A(f's_cbranch_scc1 {again}')
            stat_loads()
            A.flush(6)
            A.label(ok)

        def split3(src, d, side):
            t0, t1 = TMP, TMP + 1
            A(f'v_and_b32 v{t0}, s48, v{src}')
            A(f'v_sub_f32 v{t0}, v{src}, v{t0}')
            A(f'v_and_b32 v{t1}, s48, v{t0}')
            A(f'v_sub_f32 v{t1}, v{t0}, v{t1}')
            if side == 0:
                A(f'v_perm_b32 v{d}, v{src}, v{src}, s49')
                A(f'v_perm_b32 v{d + 1}, v{t0}, v{t0}, s49')
                A(f'v_perm_b32 v{d + 2}, v{t1}, v{src}, s49')
            else:
                A(f'v_perm_b32 v{d}, v{t0}, v{src}, s49')
                A(f'v_perm_b32 v{d + 1}, v{t0}, v{src}, s49')
                A(f'v_perm_b32 v{d + 2}, v{src}, v{t1}, s49')
            A(f'v_mov_b32 v{d + 3}, 0')

        def rank1():
            A('s_mov_b32 s48, 0xffff0000'); A('s_mov_b32 s49, 0x07060302')
            for xt in range(NX):
                split3(SNM + xt, NMF + 4 * xt, 1)
            for t in range(NW):
                split3(SCS + t, CSF + 4 * t, 0)
                for xt in range(NX):
                    a = AC(xt, t)
                    c, n = f'v[{CSF + 4 * t}:{CSF + 4 * t + 3}]', f'v[{NMF + 4 * xt}:{NMF + 4 * xt + 3}]'
                    if TR:
                        A(f'v_mfma_f32_32x32x16_bf16 v[{a}:{a + 15}], {c}, {n}, v[{a}:{a + 15}]')
                    else:
                        A(f'v_mfma_f32_32x32x16_bf16 v[{a}:{a + 15}], {n}, {c}, v[{a}:{a + 15}]')

        def role(r):
            NP = P['NPX'] if r == 'x' else P['NPW']
            if r == 'x':
                A('s_mov_b32 s16, s24'); A('s_mov_b32 s17, s25'); A('s_mov_b32 s18, s26'); A('s_mov_b32 s19, s27')
                A(f'v_lshrrev_b32 v{V_T}, 3, v{V_LANE}')
                A(f'v_mul_u32_u24 v{V_T}, 1280, v{V_T}')
                A(f'v_lshrrev_b32 v{V_T + 1}, 4, v{V_LANE}')
                A(f'v_and_b32 v{V_T + 2}, 7, v{V_LANE}')
                A(f'v_xor_b32 v{V_T + 1}, v{V_T + 1}, v{V_T + 2}')
                A(f'v_lshl_add_u32 v{VP}, v{V_T + 1}, 4, v{V_T}')
                A(f'v_xor_b32 v{VP + 1}, 64, v{VP}')
                A(f'v_add_u32 v{VP + 1}, {8 * 1280}, v{VP + 1}')
                for p in range(2, NP):
                    A(f'v_add_u32 v{VP + p}, {16 * 1280}, v{VP + p - 2}')
                A(f's_lshl_b32 s42, s32, {6 if NX == 2 else 5}'); A('s_add_u32 s42, s42, s35')
                A('s_mul_i32 s37, s42, 1280')
                A(f's_lshl_b32 s46, s32, {13 if NX == 2 else 12}')
                A(f's_add_u32 s56, s46, {3 * XS}')
            else:
                A.label(f'{name}_{pn}_w')
                A('s_and_b32 s42, s32, 1')
                A('s_bfe_u32 s43, s32, 0x10001')
                if pn == 'gu':
                    A('s_cmp_eq_u32 s43, 0')
                    A('s_cselect_b32 s16, s8, s10'); A('s_cselect_b32 s17, s9, s11')
                    A('s_mul_i32 s37, s36, 192')
                    A('s_mul_i32 s50, s42, 3')
                    A(f's_mul_i32 s46, s43, {UPOFF}'); A('s_mul_i32 s42, s42, 3072'); A('s_add_u32 s46, s46, s42')
                elif pn == 'q':
                    A('s_mov_b32 s16, s6'); A('s_mov_b32 s17, s7')
                    A('s_lshl_b32 s37, s36, 8')
                    A('s_lshl_b32 s50, s54, 1')
                    A('s_lshl_b32 s46, s54, 11')
                else:
                    A('s_mov_b32 s16, s6'); A('s_mov_b32 s17, s7')
                    A('s_mul_i32 s37, s36, 320'); A('s_mul_i32 s46, s43, 1280'); A('s_add_u32 s37, s37, s46')
                    A('s_add_u32 s37, s37, 1280')
                    A('s_mul_i32 s50, s42, 5')
                    A('s_mul_i32 s46, s43, 10240'); A('s_mul_i32 s42, s42, 5120'); A('s_add_u32 s46, s46, s42')
                A(f's_add_u32 s46, s46, {XB}')
                A(f's_mov_b32 s18, {640 * STRIDE}'); A('s_mov_b32 s19, 0x20000')
                A(f's_mov_b32 s38, {32 * STRIDE}')
                A(f's_add_u32 s56, s46, {NSLOT * WS}')
                A('s_lshl_b32 s50, s50, 6')
                magic, sh = {12: (43691, 19), 16: (1, 4), 20: (52429, 20)}[RG]
                A(f's_mov_b32 s42, {magic}'); A(f's_mov_b32 s43, {STRIDE}')
                for p in range(NP):
                    g, k, t = V_T, V_T + 1, V_T + 2
                    A(f'v_add_u32 v{g}, s50, v{V_LANE}')
                    if p:
                        A(f'v_add_u32 v{g}, {64 * p}, v{g}')
                    A(f'v_mul_u32_u24 v{k}, s42, v{g}')
                    A(f'v_lshrrev_b32 v{k}, {sh}, v{k}')
                    A(f'v_mul_u32_u24 v{t}, {RG}, v{k}')
                    A(f'v_sub_u32 v{g}, v{g}, v{t}')
                    if pn == 'q':
                        A(f'v_lshrrev_b32 v{t}, 2, v{g}')
                        A(f'v_sub_u32 v{t}, v{t}, v{k}')
                        A(f'v_and_b32 v{t}, 3, v{t}')
                        A(f'v_and_b32 v{g}, 3, v{g}')
                        A(f'v_lshl_add_u32 v{g}, v{t}, 2, v{g}')
                    A(f'v_mul_u32_u24 v{k}, s43, v{k}')
                    A(f'v_lshl_add_u32 v{VP + p}, v{g}, 4, v{k}')
            A('s_mov_b32 s40, s46')
            if ROT:
                A('s_lshl_b32 s71, s33, 1'); A('s_add_u32 s71, s71, s34'); A('s_and_b32 s71, s71, 7')
                A('s_mul_i32 s71, s71, 5'); A('s_lshr_b32 s71, s71, 2')
                if r == 'x':
                    A('s_add_u32 s38, s37, 1280')
                    A('s_lshl_b32 s71, s71, 7')
                else:
                    A(f's_mul_i32 s71, s71, {64 * STRIDE}')
                A('s_add_u32 s37, s37, s71')
            A('s_nop 4')
            for h in range(4):
                for g in dma(NP) + [adv_wr(r, h & 1)]:
                    for x in g:
                        A(x)
                if h == 1:
                    A('s_barrier')
            later = 3 * NP if r == 'w' else 2 * NP
            stamp(A, 1)
            stats_setup()
            if EARLY:
                for g in stats_loads():
                    for x in g:
                        A(x)
            rd_setup()
            stamp(A)
            A('s_mov_b32 s39, 0')
            A('s_mov_b32 s61, 0')
            for x in rd_ptr(0):
                A(x)
            A(f's_waitcnt vmcnt({later + (10 if EARLY else 0)}) lgkmcnt(0)')
            A('s_barrier')
            stamp(A)
            for x in reads(0, 0):
                A(x)
            fill['q'] = stats_loads()
            fill['slots'] = NX * NW
            S = len(fill['q'])
            if EARLY:
                fill['q'] = []
            A('s_movk_i32 s41, 4')
            nw = (lambda par: 2 * NP) if r == 'w' else (lambda par: NP if par else None)

            def pub():
                if r != 'w':
                    return
                l = newl('np')
                A('s_cmp_lg_u32 s41, s60')
                A(f's_cbranch_scc1 {l}')
                publish()
                A.flush(4)
                A.label(l)

            def start_fill():
                fill['q'] = stats_compute()
                fill['slots'] = 5 * NX * NW
            for h in range(8):
                w = nw(h & 1)
                if w is not None and h < 3:
                    w += S
                mid = None
                if h == 3:
                    mid = start_fill
                if h == 6:
                    assert not fill['q']
                    if r == 'w':
                        mid = cs_phase2
                half_stage(r, h & 1, NP, w, mid=mid, first=(h == 0))
                if h == 3:
                    stamp(A)
            stamp(A)
            A.flush()
            lp = newl('loop')
            A.label(lp)
            half_stage(r, 0, NP, nw(0), mid=pub)
            half_stage(r, 1, NP, nw(1))
            A('s_sub_u32 s41, s41, 1')
            A('s_cmp_lg_u32 s41, 0')
            A.flush()
            A(f's_cbranch_scc1 {lp}')
            stamp(A)

            def m16():
                flag_load()
                if r == 'x':
                    zero_k2_flags()
            half_stage(r, 0, NP, nw(0), do_dma=False, mid=m16)
            half_stage(r, 1, NP, 0, do_dma=False, mid=flag_check)
            half_stage(r, 0, NP, None, barrier=False, do_dma=False)
            half_stage(r, 1, NP, None, barrier=False, nxt=False, do_dma=False)
            stamp(A)
            A.flush()
            if r == 'x':
                A(f's_branch {name}_{pn}_epi')
        role('x')
        role('w')
        A.label(f'{name}_{pn}_epi')

        flag_slow()
        if TR:
            A('s_lshr_b32 s42, s35, 6'); A('s_add_u32 s42, s42, s54'); A(f's_mul_i32 s42, s42, {(54 if pn == "gu" else 20) * 4096}')
            A(f'v_lshrrev_b32 v{V_T}, 4, v{V_L31}')
            A(f'v_lshl_add_u32 v{V_T}, v{V_T}, 10, s42')
            A(f'v_and_b32 v{V_OUT}, 15, v{V_L31}')
            A(f'v_lshl_add_u32 v{V_OUT}, v{V_OUT}, 4, v{V_T}')
            A(f'v_lshl_add_u32 v{V_OUT}, v{V_HF}, 8, v{V_OUT}')
        if pn == 'gu':
            if BLK:
                A('s_mul_i32 s42, s36, 6'); A('s_mul_i32 s43, s55, 3'); A('s_add_u32 s52, s42, s43')
                for t, d in enumerate(('s42', 's43', 's50')):
                    A(f's_add_u32 s47, s52, {t}')
                    A(f's_lshr_b32 {d}, s47, 1'); A(f's_lshl_b32 {d}, {d}, 12')
                    A('s_and_b32 s47, s47, 1'); A('s_lshl_b32 s47, s47, 9')
                    A(f's_add_u32 {d}, {d}, s47'); A(f's_add_u32 {d}, {d}, {OFF_H}')
            else:
                A('s_mul_i32 s42, s36, 192'); A('s_mul_i32 s43, s55, 96'); A('s_add_u32 s42, s42, s43')
                A(f's_add_u32 s42, s42, {OFF_H}'); A(f's_add_u32 s43, s42, {32 * 3456}')
            A(f's_mov_b32 s47, {NLOG2E}')
            A('s_waitcnt vmcnt(0)')
            stamp(A)
            rank1()
            C1, RI = ST, ST + 2
            for xt in range(2):
                A(f'v_mul_f32 v{C1 + xt}, s47, v{SR + xt}')
                A(f'v_rcp_f32 v{RI + xt}, v{SR + xt}')
            for t in range(3):
                for xt in range(2):
                    a = AC(xt, t)
                    for i in range(8):
                        A(f'v_mul_f32 v{a + i}, v{C1 + xt}, v{a + i}')
                    for i in range(8):
                        A(f'v_exp_f32 v{a + i}, v{a + i}')
                    for i in range(8):
                        A(f'v_fma_f32 v{a + i}, v{a + i}, v{RI + xt}, v{RI + xt}')
                    for i in range(8):
                        A(f'v_rcp_f32 v{a + i}, v{a + i}')
                    for i in range(8):
                        A(f'v_mul_f32 v{a + 8 + i}, v{a + i}, v{a + 8 + i}')
                    for j in range(4):
                        A(f'v_cvt_pk_bf16_f32 v{a + j}, v{a + 8 + 2 * j}, v{a + 9 + 2 * j}')
                    A(f'v_permlane32_swap_b32 v{a}, v{a + 2}')
                    A(f'v_permlane32_swap_b32 v{a + 1}, v{a + 3}')
                    if BLK:
                        A(f'buffer_store_dwordx4 v[{a}:{a + 3}], v{V_OUT}, s[20:23], {("s42", "s43", "s50")[t]} offen offset:{2048 * xt}{WT}')
                    else:
                        A(f'buffer_store_dwordx4 v[{a}:{a + 3}], v{V_OUT}, s[20:23], {"s43" if xt else "s42"} offen offset:{32 * t}{WT}')
            stamp_dump(A)
            A('s_endpgm')
        elif pn == 'q':
            if BLK:
                A('s_lshl_b32 s42, s36, 14'); A('s_lshl_b32 s43, s55, 13'); A('s_add_u32 s42, s42, s43')
                A(f's_add_u32 s57, s42, {OFF_PQ}'); A('s_add_u32 s58, s57, 4096')
            else:
                A('s_lshl_b32 s42, s36, 8'); A('s_lshl_b32 s43, s55, 7'); A('s_add_u32 s42, s42, s43')
                A(f's_add_u32 s57, s42, {OFF_PQ}'); A(f's_add_u32 s58, s57, {32 * 1280}')
            A(f's_waitcnt vmcnt(0)')
            rank1()
            C1 = ST
            for xt in range(2):
                A(f'v_mul_f32 v{C1 + xt}, s44, v{SR + xt}')
            for t in range(2):
                for xt in range(2):
                    a = AC(xt, t)
                    ops = [phi2_ops(a + i, TMP + i, C1 + xt, SR + xt) for i in range(16)]
                    for k in range(6):
                        for i in range(16):
                            A(ops[i][k])
                    for j in range(8):
                        A(f'v_cvt_pk_bf16_f32 v{a + j}, v{a + 2 * j}, v{a + 2 * j + 1}')
                    for pr in range(2):
                        A(f'v_permlane32_swap_b32 v{a + 4 * pr}, v{a + 4 * pr + 2}')
                        A(f'v_permlane32_swap_b32 v{a + 4 * pr + 1}, v{a + 4 * pr + 3}')
                    for pr in range(2):
                        if BLK:
                            A(f'buffer_store_dwordx4 v[{a + 4 * pr}:{a + 4 * pr + 3}], v{V_OUT}, s[20:23], {("s57", "s58")[t]} offen offset:{2048 * xt + 512 * pr}{WT}')
                        else:
                            A(f'buffer_store_dwordx4 v[{a + 4 * pr}:{a + 4 * pr + 3}], v{V_OUT}, s[20:23], {"s58" if xt else "s57"} offen offset:{64 * t + 32 * pr}{WT}')
            stamp_dump(A)
            A('s_endpgm')
        else:
            EXV = 40960
            A(f'v_lshlrev_b32 v{V_OUT}, 4, v{V_LANE}')
            A('s_lshl_b32 s42, s54, 11'); A(f's_mul_i32 s43, s55, {EXV}'); A('s_add_u32 s42, s42, s43')
            A(f'v_add_u32 v{V_FLG}, s42, v{V_OUT}')
            A('s_waitcnt vmcnt(0)')
            A('s_barrier')
            rank1()
            R, C = ST, ACC + 80
            lv, lj = newl('isv'), newl('kvj')
            A('s_cmp_lg_u32 s55, 0')
            A(f's_cbranch_scc1 {lv}')
            for i in range(16):
                A(f'v_mul_f32 v{C + i}, s44, v{R + i}')
            for t in range(5):
                a = AC(0, t)
                ops = [phi2_ops(a + i, TMP + i, C + i, R + i) for i in range(16)]
                for k in range(6):
                    for i in range(16):
                        A(ops[i][k])
            A.flush(4)
            A(f's_branch {lj}')
            A.label(lv)
            A.flush(12)
            for t in range(5):
                a = AC(0, t)
                for i in range(16):
                    A(f'v_mul_f32 v{a + i}, v{R + i}, v{a + i}')
            A.flush(4)
            A.label(lj)
            for t in range(5):
                a = AC(0, t)
                for j in range(8):
                    A(f'v_cvt_pk_bf16_f32 v{a + j}, v{a + 2 * j}, v{a + 2 * j + 1}')
                A(f'ds_write_b128 v{V_FLG}, v[{a}:{a + 3}] offset:{8192 * t}')
                A(f'ds_write_b128 v{V_FLG}, v[{a + 4}:{a + 7}] offset:{8192 * t + 1024}')
            ON = ST + 8
            for j in range(4):
                A(f'v_mov_b32 v{ON + j}, 0x3f803f80')
            A('s_lshl_b32 s57, s53, 2'); A('s_add_u32 s57, s57, s36')
            A(f's_mul_i32 s57, s57, {KVW}'); A(f's_add_u32 s57, s57, {OFF_KVP}')
            A('s_mul_i32 s58, s53, 2560'); A('s_mul_i32 s42, s36, 640'); A('s_add_u32 s58, s58, s42')
            A(f's_add_u32 s58, s58, {OFF_ZP}')
            A('s_waitcnt lgkmcnt(0)')
            A('s_barrier')
            JA, JB, D2 = ACC, ACC + 32, ACC + 64

            def job_block(ck, cv):
                for u in range(4):
                    for h in range(2):
                        A(f'ds_read_b128 v[{JA + 8 * u + 4 * h}:{JA + 8 * u + 4 * h + 3}], v{V_OUT} offset:{ck * 8192 + u * 2048 + h * 1024}')
                        if cv is not None:
                            A(f'ds_read_b128 v[{JB + 8 * u + 4 * h}:{JB + 8 * u + 4 * h + 3}], v{V_FLG} offset:{cv * 8192 + u * 2048 + h * 1024}')
                n = 0
                per = 2 if cv is not None else 1
                for u in range(4):
                    for h in range(2):
                        n += 1
                        A(f's_waitcnt lgkmcnt({per * (8 - n)})')
                        b = f'v[{JB + 8 * u + 4 * h}:{JB + 8 * u + 4 * h + 3}]' if cv is not None else f'v[{ON}:{ON + 3}]'
                        c = '0' if n == 1 else f'v[{D2}:{D2 + 15}]'
                        A(f'v_mfma_f32_32x32x16_bf16 v[{D2}:{D2 + 15}], v[{JA + 8 * u + 4 * h}:{JA + 8 * u + 4 * h + 3}], {b}, {c}')
                if cv is None:
                    A(f'v_lshlrev_b32 v{V_T}, 4, v{V_HF}')
                    A(f's_add_u32 s42, s58, {128 * ck}')
                    A('s_mov_b32 exec_lo, 1'); A('s_mov_b32 exec_hi, 1')
                    for q in range(4):
                        A(f'buffer_store_dwordx4 v[{D2 + 4 * q}:{D2 + 4 * q + 3}], v{V_T}, s[20:23], s42 offen offset:{32 * q}{WT}')
                    A('s_mov_b64 exec, -1')
                    return
                jid = ck if ck == cv else (5 + ck if ck < cv else 9 + cv)
                A(f's_add_u32 s42, s57, {4096 * jid}')
                for q in range(4):
                    masks = []
                    for hf in range(2):
                        nk = 32 * ck + 8 * q + 4 * hf
                        m = 0
                        for l in range(32):
                            if (32 * cv + l) // 20 == nk // 20:
                                m |= 0xff << (l & ~7)
                        masks.append(m)
                    if not (masks[0] or masks[1]):
                        continue
                    A(f's_mov_b32 exec_lo, 0x{masks[0]:x}')
                    A(f's_mov_b32 exec_hi, 0x{masks[1]:x}')
                    A(f'buffer_store_dwordx4 v[{D2 + 4 * q}:{D2 + 4 * q + 3}], v{V_OUT}, s[20:23], s42 offen offset:{1024 * q}{WT}')
                A('s_mov_b64 exec, -1')
            A(f'v_add_u32 v{V_FLG}, {EXV}, v{V_OUT}')
            full = [(c, c) for c in range(5)] + [(c - 1, c) for c in range(1, 5)] + [(c, c - 1) for c in range(1, 5)]
            zs = [(c, None) for c in range(5)]
            assign = [[] for _ in range(8)]
            for i, j in enumerate(full[:10]):
                assign[i % 5].append(j)
            for i, j in enumerate(full[10:]):
                assign[5 + i].append(j)
            for i, j in enumerate(zs):
                assign[5 + (i % 3)].append(j)
            for w in range(8):
                nl = newl('jw')
                if w < 7:
                    A(f's_cmp_lg_u32 s32, {w}')
                    A(f's_cbranch_scc1 {nl}')
                for j in assign[w]:
                    job_block(*j)
                    A.flush()
                sv = _sn[0]
                stamp_dump(A)
                _sn[0] = sv
                A('s_endpgm')
                if w < 7:
                    A.label(nl)

    for pn in ('gu', 'q', 'kv'):
        gen_path(pn)
    A.label(f'{name}_end')
    A('s_endpgm')
```

```python
from asmlib import Asm
from layout import *
import os

K2_BLOCK = 512
K2_LDS = 163840
K2_VGPR = 208
K2_AGPR = 48
REG = 20480
EPS6 = 0x358637bd
NLOG2E = 0xbfb8aa3b
BIG = 0x40000000
FL = os.environ.get('K2FLAGS', '').split(',')
STAMP = 'stamp' in FL
STAMP_OFF = 24 << 20
SLEEP1 = int(os.environ.get('SLEEP1', '16'))
YC = [int(x) for x in os.environ.get('YC', '14,14,13,13,0,0,0,0').split(',')]
PRE = int(os.environ.get('PRE', '0'))
SLEEP2 = int(os.environ.get('SLEEP2', '2'))
LW = 16384
assert sum(YC) == 54
SC = ' sc1'
SLEEP0 = int(os.environ.get('SLEEP0', '0'))
ROT = 'rot' in FL
YSC = ' sc1' if 'ysc' in FL else ''
SPRIO = int(os.environ.get('SPRIO', '0'))

V_LANE, V_A, V_B, V_B2, V_X, V_FL = 1, 2, 3, 4, 5, 6
V_T = 8
VQ = 24
YF = 104
XR = 104
ACC = 128
R = 3
RY = int(os.environ.get('RY', '3'))
RS = int(os.environ.get('RS', '3'))
POLLW = int(os.environ.get('POLLW', '6'))
OFF_FW = OFF_FLG
OFF_FA = OFF_FLG + 2048


def buf(b, i):
    if b < 2:
        r = 32 + 36 * b + 4 * i
        return f'v[{r}:{r + 3}]'
    if b == 2:
        return f'a[{4 * i}:{4 * i + 3}]'
    if i < 4:
        return f'v[{112 + 4 * i}:{115 + 4 * i}]'
    if i < 7:
        return f'a[{36 + 4 * (i - 4)}:{39 + 4 * (i - 4)}]'
    return f'v[{16 + 4 * (i - 7)}:{19 + 4 * (i - 7)}]'


class Stamper:
    def __init__(self):
        self.n = 0

    def __call__(self, A, reset=None):
        if not STAMP:
            return
        if reset is not None:
            self.n = reset
        assert self.n < 14
        A(f's_memtime s[{70 + 2 * self.n}:{71 + 2 * self.n}]')
        self.n += 1

    def dump(self, A):
        if not STAMP:
            return
        self(A)
        A('s_waitcnt lgkmcnt(0)')
        A('s_lshl_b32 s62, s2, 3')
        A('s_add_u32 s62, s62, s34')
        A('s_lshl_b32 s62, s62, 9')
        A(f's_add_u32 s62, s62, {STAMP_OFF}')
        A('s_mov_b64 exec, 1')
        for i in range(self.n):
            A(f'v_mov_b32 v2, s{70 + 2 * i}')
            A(f'v_mov_b32 v3, s{71 + 2 * i}')
            A(f'buffer_store_dwordx2 v[2:3], off, s[16:19], s62 offset:{8 * i}')
            A('s_nop 1')
        A('v_mov_b32 v2, 0')
        A('v_mov_b32 v3, 0')
        A(f'buffer_store_dwordx2 v[2:3], off, s[16:19], s62 offset:{8 * self.n}')
        A('s_mov_b64 exec, -1')


def gen_k2(A, name):
    ST = Stamper()
    A.raw(f'.globl {name}')
    A.raw('.p2align 8')
    A.raw(f'.type {name},@function')
    A.label(name)
    A('s_cmp_ge_u32 s2, 256')
    A(f's_cbranch_scc1 {name}_end')
    ST(A)
    A('s_load_dwordx2 s[6:7], s[0:1], 72')
    A('s_load_dwordx2 s[4:5], s[0:1], 0')
    A('s_load_dwordx2 s[10:11], s[0:1], 56')
    A('s_load_dwordx2 s[50:51], s[0:1], 16')
    A('s_and_b32 s42, s2, 7')
    A('s_lshr_b32 s43, s2, 3')
    A('s_and_b32 s32, s43, 7')
    A('s_lshr_b32 s43, s43, 3')
    A('s_lshl_b32 s33, s42, 2')
    A('s_add_u32 s33, s33, s43')
    A(f'v_and_b32 v{V_LANE}, 63, v0')
    A(f'v_lshrrev_b32 v{V_T}, 6, v0')
    A(f'v_readfirstlane_b32 s34, v{V_T}')
    A('s_lshr_b32 s56, s2, 3')
    A('s_and_b32 s57, s2, 7')
    A(f'v_lshlrev_b32 v{V_B}, 4, v{V_LANE}')
    A(f'v_add_u32 v{V_B2}, 4096, v{V_B}')
    A(f's_mul_i32 s35, s34, {REG}')
    A('s_and_b32 s38, s34, 1')
    yf = [sum(YC[:i]) for i in range(8)]
    pk_f = sum(f << (8 * i) for i, f in enumerate(yf))
    pk_c = sum(c << (4 * i) for i, c in enumerate(YC))
    A(f's_mov_b32 s44, {pk_f & 0xffffffff}'); A(f's_mov_b32 s45, {pk_f >> 32}')
    A('s_lshl_b32 s43, s34, 3')
    A('s_lshr_b64 s[44:45], s[44:45], s43')
    A('s_and_b32 s39, s44, 0xff')
    A('s_lshl_b32 s43, s34, 2')
    A(f's_lshr_b32 s46, {pk_c}, s43')
    A('s_and_b32 s46, s46, 15')
    A('s_mov_b32 s47, s46')
    A(f's_mul_i32 s42, s33, {54 * 4096}')
    if ROT:
        A('s_lshl_b32 s66, s33, 1'); A('s_add_u32 s66, s66, s32'); A('s_and_b32 s66, s66, 7')
        A('s_mul_i32 s43, s66, 7'); A('s_lshr_b32 s43, s43, 2')
        A('s_add_u32 s39, s39, s43')
        A('s_sub_u32 s43, s39, 54')
        A('s_cmp_ge_u32 s39, 54')
        A('s_cselect_b32 s39, s43, s39')
        A('s_mov_b32 s48, 54')
        A(f's_add_u32 s36, s42, {OFF_H}')
        A(f's_mul_i32 s37, s32, {1728 * 160}')
        A(f's_add_u32 s37, s37, {OFF_WD}')
    else:
        A('s_lshl_b32 s36, s39, 12')
        A('s_add_u32 s36, s36, s42')
        A(f's_add_u32 s36, s36, {OFF_H}')
        A(f's_mul_i32 s37, s32, {1728 * 160}')
        A('s_mul_i32 s43, s39, 5120')
        A('s_add_u32 s37, s37, s43')
        A(f's_add_u32 s37, s37, {OFF_WD}')
    A(f's_mov_b32 s49, {BIG}')
    A('s_mov_b32 s64, 0xffff0000')
    A('s_waitcnt lgkmcnt(0)')
    A('s_mov_b32 s16, s6'); A('s_and_b32 s17, s7, 0xffff'); A(f's_mov_b32 s18, {(32 << 20) if STAMP else WS_END}'); A('s_mov_b32 s19, 0x20000')

    def srds():
        A('s_mov_b32 s12, s4'); A('s_and_b32 s13, s5, 0xffff'); A(f's_mov_b32 s14, {2048 * 1280}'); A('s_mov_b32 s15, 0x20000')
        A('s_mov_b32 s24, s10'); A('s_and_b32 s25, s11, 0xffff'); A(f's_mov_b32 s26, {2048 * 1280}'); A('s_mov_b32 s27, 0x20000')

    def nxt():
        if not ROT:
            return ['s_mov_b32 s40, s36',
                    's_mov_b32 s41, s37',
                    f's_add_u32 s36, s36, {0 if "hota" in FL else 4096}',
                    f's_add_u32 s37, s37, {0 if "hotb" in FL else 5120}']
        return ['s_lshl_b32 s40, s39, 12',
                's_mul_i32 s41, s39, 5120',
                's_add_u32 s40, s40, s36',
                's_add_u32 s41, s41, s37',
                's_add_u32 s39, s39, 1',
                's_cmp_ge_u32 s39, s48',
                's_cselect_b32 s39, 0, s39']

    def ldB(b, nt, sc):
        return f'buffer_load_dwordx4 {buf(b, nt)}, v{V_B if nt < 4 else V_B2}, s[16:19], s41 offen offset:{1024 * (nt & 3)}{sc}'

    def ldA(b, rt, sc):
        return f'buffer_load_dwordx4 {buf(b, 5 + rt)}, v{V_B}, s[16:19], s40 offen offset:{1024 * rt}{sc}'

    def issue(b, sc=''):
        for x in nxt():
            A(x)
        for nt in range(5):
            A(ldB(b, nt, sc))
        for rt in range(4):
            A(ldA(b, rt, sc))

    def mf(b, nt, rt, zero=False):
        d = ACC + 4 * (5 * rt + nt)
        c = '0' if zero else f'v[{d}:{d + 3}]'
        return f'v_mfma_f32_16x16x32_bf16 v[{d}:{d + 3}], {buf(b, nt)}, {buf(b, 5 + rt)}, {c}'

    def misc_setup():
        srds()
        A(f'v_and_b32 v{V_T}, 15, v{V_LANE}')
        A(f'v_lshrrev_b32 v{V_T + 1}, 4, v{V_LANE}')
        A('s_lshr_b32 s44, s34, 1')
        A('s_lshl_b32 s44, s44, 4')
        A('s_lshl_b32 s45, s33, 6')
        A('s_add_u32 s44, s44, s45')
        A(f'v_add_u32 v{V_T}, s44, v{V_T}')
        A('s_movk_i32 s44, 1280')
        A(f'v_mul_lo_u32 v{V_X}, v{V_T}, s44')
        A(f'v_lshl_add_u32 v{V_X}, v{V_T + 1}, 3, v{V_X}')
        A('s_mul_i32 s45, s32, 160')
        A('s_mul_i32 s44, s38, 96')
        A('s_add_u32 s45, s45, s44')
        A(f'v_add_u32 v{V_X}, s45, v{V_X}')
        A(f'v_min_u32 v{V_FL}, 39, v{V_LANE}')
        A(f'v_lshlrev_b32 v{V_FL}, 3, v{V_FL}')
        A('s_lshl_b32 s44, s32, 8')
        A('s_lshl_b32 s45, s33, 6')
        A(f's_add_u32 s45, s45, {2048 - 256}')
        A(f'v_mov_b32 v{V_T}, s44'); A(f'v_mov_b32 v{V_T + 1}, s45')
        A(f'v_cmp_gt_u32 vcc, 32, v{V_LANE}')
        A(f'v_cndmask_b32 v{V_T}, v{V_T + 1}, v{V_T}, vcc')
        A(f'v_add_u32 v{V_FL}, v{V_FL}, v{V_T}')
        A(f's_mov_b32 s65, {OFF_FLG}')

    def lw_init():
        A(f'v_mov_b32 v{V_T + 8}, 0')
        A(f'v_mov_b32 v{V_T + 9}, s35')
        A(f'ds_write_b32 v{V_T + 9}, v{V_T + 8} offset:{LW}')

    def xloads():
        for t in range(3):
            r = XR + 2 * t
            A(f'buffer_load_dwordx2 v[{r}:{r + 1}], v{V_X}, s[12:15], 0 offen offset:{t * 32}')

    def flag():
        A(f'v_mov_b32 v{V_T}, 1')
        A('s_mov_b64 exec, 1')
        A(f'buffer_store_dword v{V_T}, off, s[16:19], s63 sc1')
        A('s_mov_b64 exec, -1')

    A('s_cmp_lt_u32 s34, 4')
    A(f's_cbranch_scc1 {name}_ygo')
    if 'notask' in FL:
        A('s_barrier')
        misc_setup()
        ST(A, 1); ST(A); ST(A)
        A(f's_branch {name}_sgo')
    A('s_cmp_ge_u32 s34, 6')
    A(f's_cbranch_scc1 {name}_paw')

    A('s_setprio 3')
    ZR = 32
    VG = 112
    A('s_mul_i32 s44, s32, 10')
    A(f'v_lshrrev_b32 v{V_T}, 5, v{V_LANE}')
    A(f'v_add_u32 v{V_T}, s44, v{V_T}')
    A(f'v_bfe_u32 v{V_T + 1}, v{V_LANE}, 4, 1')
    A(f'v_and_b32 v{V_T + 2}, 15, v{V_LANE}')
    A(f'v_lshlrev_b32 v{V_T + 2}, 4, v{V_T + 2}')
    A(f'v_lshl_add_u32 v{V_T + 1}, v{V_T + 1}, 10, v{V_T + 2}')
    A(f's_mul_i32 s58, s33, {20 * 4096}')
    A('s_lshl_b32 s59, s38, 11')
    A('s_add_u32 s58, s58, s59')
    A(f's_add_u32 s60, s58, {OFF_PQ}')
    for i in range(5):
        A(f'v_add_u32 v{V_T + 2}, {2 * i}, v{V_T}')
        A(f'v_lshrrev_b32 v{V_T + 3}, 2, v{V_T + 2}')
        A(f'v_and_b32 v{V_T + 2}, 3, v{V_T + 2}')
        A(f'v_lshl_add_u32 v{V_T + 3}, v{V_T + 3}, 12, v{V_T + 1}')
        A(f'v_lshl_add_u32 v{VG + i}, v{V_T + 2}, 8, v{V_T + 3}')
        A(f's_add_u32 m0, s35, {i * 1024}')
        A(f'buffer_load_dwordx4 v{VG + i}, s[16:19], s60 offen lds')
    A(f'v_and_b32 v{V_T}, 3, v{V_LANE}')
    A(f'v_mul_u32_u24 v{V_T}, 80, v{V_T}')
    A(f'v_lshrrev_b32 v{V_T + 1}, 2, v{V_LANE}')
    A(f'v_mul_u32_u24 v{V_T + 2}, 2560, v{V_T + 1}')
    A(f'v_add_u32 v{V_T + 2}, v{V_T}, v{V_T + 2}')
    A('s_mul_i32 s44, s32, 320')
    A(f's_add_u32 s44, s44, {OFF_ZP}')
    for q in range(5):
        r = ZR + 4 * q
        A(f'buffer_load_dwordx4 v[{r}:{r + 3}], v{V_T + 2}, s[16:19], s44 offen offset:{16 * q}')
    lw_init()
    A('s_waitcnt lgkmcnt(0)')
    A('s_barrier')
    misc_setup()
    A('s_lshl_b32 s63, s33, 3')
    A('s_add_u32 s63, s63, s32')
    A('s_lshl_b32 s63, s63, 3')
    A('s_lshl_b32 s44, s38, 2')
    A('s_add_u32 s63, s63, s44')
    A(f's_add_u32 s63, s63, {OFF_FA}')
    A(f'v_and_b32 v{V_T}, 3, v{V_LANE}')
    A(f'v_mul_u32_u24 v{V_T}, 40, v{V_T}')
    A(f'v_lshrrev_b32 v{V_T + 1}, 2, v{V_LANE}')
    A(f'v_lshl_add_u32 v{V_T + 1}, v{V_T + 1}, 4, s35')
    for q in range(5):
        A(f'v_add_u32 v{V_T + 2}, {8 * q}, v{V_T}')
        A(f'v_lshrrev_b32 v{V_T + 3}, 4, v{V_T + 2}')
        A(f'v_and_b32 v{V_T + 2}, 15, v{V_T + 2}')
        A(f'v_lshl_add_u32 v{V_T + 3}, v{V_T + 3}, 9, v{V_T + 1}')
        A(f'v_add_u32 v{VQ + q}, v{V_T + 2}, v{V_T + 3}')
    ST(A, 1)
    A('s_waitcnt vmcnt(0)')
    PQR = 72
    U = 128
    for it in range(2):
        for q in range(5):
            r = PQR + 10 * it + 2 * q
            A(f'ds_read_b64 v[{r}:{r + 1}], v{VQ + q} offset:{it * 256}')
    for ror in (4, 8):
        for j in range(20):
            A(f'v_add_f32_dpp v{ZR + j}, v{ZR + j}, v{ZR + j} row_ror:{ror} row_mask:0xf bank_mask:0xf')
    for perm in ('v_permlane16_swap_b32', 'v_permlane32_swap_b32'):
        for j in range(20):
            A(f'v_mov_b32 v{ZR + 20 + j}, v{ZR + j}')
        for j in range(20):
            A(f'{perm} v{ZR + j}, v{ZR + 20 + j}')
        for j in range(20):
            A(f'v_add_f32 v{ZR + j}, v{ZR + j}, v{ZR + 20 + j}')
    A(f's_mov_b32 s44, {EPS6}')
    A('s_waitcnt lgkmcnt(0)')
    for it in range(2):
        for j in range(10):
            A(f'v_lshlrev_b32 v{U + 20 * it + 2 * j}, 16, v{PQR + 10 * it + j}')
            A(f'v_and_b32 v{U + 20 * it + 2 * j + 1}, s64, v{PQR + 10 * it + j}')
    for it in range(2):
        A(f'v_mul_f32 v{V_T + 2 + it}, v{U + 20 * it}, v{ZR}')
    for j in range(1, 20):
        for it in range(2):
            A(f'v_fmac_f32 v{V_T + 2 + it}, v{U + 20 * it + j}, v{ZR + j}')
    for it in range(2):
        A(f'v_add_f32 v{V_T + 2 + it}, s44, v{V_T + 2 + it}')
    for it in range(2):
        A(f'v_rcp_f32 v{V_T + 2 + it}, v{V_T + 2 + it}')
    for it in range(2):
        for j in range(20):
            A(f'v_mul_f32 v{U + 20 * it + j}, v{V_T + 2 + it}, v{U + 20 * it + j}')
        for j in range(10):
            A(f'v_cvt_pk_bf16_f32 v{PQR + 10 * it + j}, v{U + 20 * it + 2 * j}, v{U + 20 * it + 2 * j + 1}')
        for q in range(5):
            r = PQR + 10 * it + 2 * q
            A(f'ds_write_b64 v{VQ + q}, v[{r}:{r + 1}] offset:{it * 256}')
    A(f'v_add_u32 v{V_T + 1}, s35, v{V_B}')
    A('s_waitcnt lgkmcnt(0)')
    for i in range(5):
        A(f'ds_read_b128 v[{U + 4 * i}:{U + 4 * i + 3}], v{V_T + 1} offset:{i * 1024}')
    A(f's_add_u32 s60, s58, {OFF_AP}')
    for i in range(5):
        A(f's_waitcnt lgkmcnt({4 - i})')
        A(f'buffer_store_dwordx4 v[{U + 4 * i}:{U + 4 * i + 3}], v{VG + i}, s[16:19], s60 offen sc1')
    ST(A)
    A('s_waitcnt vmcnt(0)')
    flag()
    ST(A)
    A.flush(4)
    A(f's_branch {name}_ygo2')

    A.label(f'{name}_paw')
    A('s_setprio 3')
    KR = 32
    WOR = 96
    t = V_T
    A(f'v_min_u32 v{t}, 59, v{V_LANE}')
    A(f'v_mul_u32_u24 v{t + 1}, 205, v{t}')
    A(f'v_lshrrev_b32 v{t + 1}, 12, v{t + 1}')
    A(f'v_mul_u32_u24 v{t + 2}, 20, v{t + 1}')
    A(f'v_sub_u32 v{t + 2}, v{t}, v{t + 2}')
    A('s_and_b32 s44, s56, 7')
    A('s_mul_i32 s44, s44, 20')
    A('s_lshl_b32 s45, s38, 3')
    A('s_add_u32 s45, s45, s44')
    A(f'v_lshl_add_u32 v{t + 1}, v{t + 1}, 2, s45')
    A(f'v_add_u32 v{t + 2}, s44, v{t + 2}')
    A(f'v_lshrrev_b32 v{t + 3}, 5, v{t + 1}')
    A(f'v_lshrrev_b32 v{t + 4}, 5, v{t + 2}')
    A(f'v_add_u32 v{t + 5}, 5, v{t + 3}')
    A(f'v_add_u32 v{t + 6}, 9, v{t + 4}')
    A(f'v_cmp_lt_u32 vcc, v{t + 3}, v{t + 4}')
    A(f'v_cndmask_b32 v{t + 5}, v{t + 6}, v{t + 5}, vcc')
    A(f'v_cmp_eq_u32 vcc, v{t + 3}, v{t + 4}')
    A(f'v_cndmask_b32 v{t + 5}, v{t + 5}, v{t + 3}, vcc')
    A(f'v_lshlrev_b32 v{t + 5}, 12, v{t + 5}')
    A(f'v_and_b32 v{t + 1}, 28, v{t + 1}')
    A(f'v_lshl_add_u32 v{t + 5}, v{t + 1}, 7, v{t + 5}')
    A(f'v_and_b32 v{t + 2}, 31, v{t + 2}')
    A(f'v_lshl_add_u32 v{t + 5}, v{t + 2}, 4, v{t + 5}')
    A('s_lshr_b32 s58, s56, 3')
    A(f's_mul_i32 s58, s58, {KVW}')
    A(f's_add_u32 s58, s58, {OFF_KVP}')
    for p in range(16):
        A(f's_add_u32 s59, s58, {p * 4 * KVW}')
        A(f'buffer_load_dwordx4 v[{KR + 4 * p}:{KR + 4 * p + 3}], v{t + 5}, s[16:19], s59 offen')
    A('s_mov_b32 s52, s50'); A('s_and_b32 s53, s51, 0xffff'); A(f's_mov_b32 s54, {640 * 1280}'); A('s_mov_b32 s55, 0x20000')
    A(f'v_min_u32 v{t + 1}, 39, v{V_LANE}')
    A(f'v_lshlrev_b32 v{t + 1}, 2, v{t + 1}')
    A('s_mul_i32 s58, s56, 25600')
    A('s_mul_i32 s59, s57, 160')
    A('s_add_u32 s58, s58, s59')
    for e in range(20):
        A(f's_add_u32 s59, s58, {e * 1280}')
        A(f'buffer_load_dword v{WOR + e}, v{t + 1}, s[52:55], s59 offen')
    lw_init()
    A('s_waitcnt lgkmcnt(0)')
    A('s_barrier')
    misc_setup()
    A('s_lshl_b32 s63, s57, 8')
    A('s_lshl_b32 s44, s56, 3')
    A('s_add_u32 s63, s63, s44')
    A('s_lshl_b32 s44, s38, 2')
    A('s_add_u32 s63, s63, s44')
    A(f's_add_u32 s63, s63, {OFF_FW}')
    A('s_mul_i32 s44, s56, 5')
    A('s_lshl_b32 s45, s38, 1')
    A('s_add_u32 s44, s44, s45')
    A('s_and_b32 s61, s44, 1')
    A('s_add_u32 s45, s44, s61')
    A('s_lshr_b32 s45, s45, 1')
    A('s_mul_i32 s60, s57, 102400')
    A(f's_add_u32 s60, s60, {OFF_WP}')

    def gaddr(dst, g, tmp):
        A(f's_lshr_b32 {dst}, {g}, 2')
        A(f's_mul_i32 {dst}, {dst}, 5120')
        A(f's_and_b32 {tmp}, {g}, 3')
        A(f's_lshl_b32 {tmp}, {tmp}, 8')
        A(f's_add_u32 {dst}, {dst}, {tmp}')
        A(f's_add_u32 {dst}, {dst}, s60')
    gaddr('s58', 's45', 's43')
    A('s_add_u32 s45, s44, 2')
    A('s_cmp_eq_u32 s61, 1')
    A('s_cselect_b32 s45, s44, s45')
    A('s_lshr_b32 s45, s45, 1')
    gaddr('s59', 's45', 's43')
    A('s_lshl_b32 s43, s61, 3')
    A('s_add_u32 s59, s59, s43')
    A('s_xor_b32 s43, s61, s38')
    A('s_cmp_eq_u32 s43, 1')
    A('s_cselect_b32 s59, s59, s49')
    ST(A, 1)
    A('s_waitcnt vmcnt(20)')
    for p in range(1, 16):
        for i in range(4):
            A(f'v_add_f32 v{KR + i}, v{KR + i}, v{KR + 4 * p + i}')
    A(f'v_min_u32 v{V_T}, 59, v{V_LANE}')
    A(f'v_lshl_add_u32 v{V_T}, v{V_T}, 4, s35')
    A(f'ds_write_b128 v{V_T}, v[{KR}:{KR + 3}]')
    WU = 36
    OUTR = 76
    A('s_waitcnt vmcnt(0)')
    for e in range(20):
        A(f'v_lshlrev_b32 v{WU + 2 * e}, 16, v{WOR + e}')
        A(f'v_and_b32 v{WU + 2 * e + 1}, s64, v{WOR + e}')
    A(f'v_mov_b32 v{V_T + 1}, s35')
    A('s_waitcnt lgkmcnt(0)')
    KB = 100
    NR = 6
    order = [(q, e) for e in range(20) for q in range(3)]

    def kread(i):
        q, e = order[i]
        r = KB + 4 * (i % NR)
        A(f'ds_read_b128 v[{r}:{r + 3}], v{V_T + 1} offset:{(q * 20 + e) * 16}')
    for i in range(NR - 1):
        kread(i)
    for i, (q, e) in enumerate(order):
        if i + NR - 1 < 60:
            kread(i + NR - 1)
        A(f's_waitcnt lgkmcnt({min(NR - 1, 59 - i)})')
        kb = KB + 4 * (i % NR)
        for j in range(4):
            o = OUTR + 2 * (4 * q + j)
            kp = kb + (j & ~1)
            if e == 0:
                sel = 'op_sel:[0,1] op_sel_hi:[1,1]' if j & 1 else 'op_sel:[0,0] op_sel_hi:[1,0]'
                A(f'v_pk_mul_f32 v[{o}:{o + 1}], v[{WU}:{WU + 1}], v[{kp}:{kp + 1}] {sel}')
            else:
                sel = 'op_sel:[0,1,0] op_sel_hi:[1,1,1]' if j & 1 else 'op_sel:[0,0,0] op_sel_hi:[1,0,1]'
                A(f'v_pk_fma_f32 v[{o}:{o + 1}], v[{WU + 2 * e}:{WU + 2 * e + 1}], v[{kp}:{kp + 1}], v[{o}:{o + 1}] {sel}')
    PK = 36
    for q in range(3):
        for c in range(2):
            for hh in range(2):
                o = OUTR + 2 * (4 * q + 2 * hh) + c
                A(f'v_cvt_pk_bf16_f32 v{PK + 4 * q + 2 * c + hh}, v{o}, v{o + 2}')
    A(f'v_min_u32 v{V_T}, 39, v{V_LANE}')
    A('s_lshl_b32 s43, s61, 3')
    A('s_add_u32 s43, s43, s35')
    A(f'v_lshl_add_u32 v{V_T}, v{V_T}, 6, s43')
    for q in range(3):
        for c in range(2):
            r = PK + 4 * q + 2 * c
            A(f'ds_write_b64 v{V_T}, v[{r}:{r + 1}] offset:{1024 + 32 * c + 8 * q}')
    A('s_lshl_b32 s43, s61, 4')
    A('s_add_u32 s43, s43, s35')
    A(f'v_lshl_add_u32 v{V_T}, v{V_LANE}, 5, s43')
    A('s_lshl_b32 s43, s61, 3')
    A('s_sub_u32 s43, s35, s43')
    A(f'v_lshl_add_u32 v{V_T + 1}, v{V_LANE}, 5, s43')
    A(f'v_lshrrev_b32 v{V_T + 2}, 4, v{V_LANE}')
    A(f'v_lshlrev_b32 v{V_T + 2}, 10, v{V_T + 2}')
    A(f'v_and_b32 v{V_T + 3}, 15, v{V_LANE}')
    A(f'v_lshl_add_u32 v{V_T + 2}, v{V_T + 3}, 4, v{V_T + 2}')
    A(f'v_add_u32 v{V_T + 3}, 4096, v{V_T + 2}')
    A('s_waitcnt lgkmcnt(0)')
    A(f'ds_read_b128 v[{KB}:{KB + 3}], v{V_T} offset:1024')
    A(f'ds_read_b128 v[{KB + 4}:{KB + 7}], v{V_T} offset:{1024 + 2048}')
    A(f'ds_read_b64 v[{KB + 8}:{KB + 9}], v{V_T + 1} offset:{1024 + 16}')
    A(f'ds_read_b64 v[{KB + 10}:{KB + 11}], v{V_T + 1} offset:{1024 + 2048 + 16}')
    A('s_waitcnt lgkmcnt(0)')
    A(f'buffer_store_dwordx4 v[{KB}:{KB + 3}], v{V_T + 2}, s[16:19], s58 offen sc1')
    A(f'buffer_store_dwordx2 v[{KB + 8}:{KB + 9}], v{V_T + 2}, s[16:19], s59 offen sc1')
    A('s_mov_b64 exec, 0xffff')
    A(f'buffer_store_dwordx4 v[{KB + 4}:{KB + 7}], v{V_T + 3}, s[16:19], s58 offen sc1')
    A(f'buffer_store_dwordx2 v[{KB + 10}:{KB + 11}], v{V_T + 3}, s[16:19], s59 offen sc1')
    A('s_mov_b64 exec, -1')
    ST(A)
    A('s_waitcnt vmcnt(0)')
    flag()
    ST(A)
    A.flush(4)

    A.label(f'{name}_ygo2')
    xloads()
    A('s_mov_b32 s45, 30000')
    A(f's_cmp_lg_u32 s34, {POLLW}')
    A(f's_cbranch_scc1 {name}_lw')
    if SLEEP0:
        A(f's_sleep {SLEEP0}')
    A.flush(2)
    A.label(f'{name}_poll')
    A(f'buffer_load_dwordx2 v[{V_T + 2}:{V_T + 3}], v{V_FL}, s[16:19], s65 offen sc1')
    A('s_sub_u32 s45, s45, 1')
    A('s_waitcnt vmcnt(0)')
    A(f'v_and_b32 v{V_T + 2}, v{V_T + 2}, v{V_T + 3}')
    A(f'v_cmp_ne_u32 vcc, 1, v{V_T + 2}')
    A('s_cmp_eq_u32 s45, 0')
    A(f's_cbranch_scc1 {name}_poll_done')
    A('s_nop 1')
    A(f's_cbranch_vccz {name}_poll_done')
    A(f's_sleep {SLEEP1}')
    A(f's_branch {name}_poll')
    A.label(f'{name}_poll_done')
    A(f'v_mov_b32 v{V_T + 2}, 1')
    A(f'v_and_b32 v{V_T + 3}, 3, v{V_LANE}')
    A(f's_mov_b32 s44, {REG}')
    A(f'v_mul_lo_u32 v{V_T + 3}, v{V_T + 3}, s44')
    A(f'v_add_u32 v{V_T + 3}, {4 * REG}, v{V_T + 3}')
    A(f'ds_write_b32 v{V_T + 3}, v{V_T + 2} offset:{LW}')
    A(f's_branch {name}_sgo')
    A.label(f'{name}_lw')
    A(f'v_mov_b32 v{V_T + 3}, s35')
    A('s_mov_b32 s45, 2000000')
    A.label(f'{name}_lw2')
    A(f'ds_read_b32 v{V_T + 2}, v{V_T + 3} offset:{LW}')
    A('s_sub_u32 s45, s45, 1')
    A('s_waitcnt lgkmcnt(0)')
    A(f'v_cmp_ne_u32 vcc, 1, v{V_T + 2}')
    A('s_cmp_eq_u32 s45, 0')
    A(f's_cbranch_scc1 {name}_sgo')
    A('s_nop 1')
    A(f's_cbranch_vccz {name}_sgo')
    A(f's_sleep {SLEEP2}')
    A(f's_branch {name}_lw2')
    A.label(f'{name}_sgo')
    ST(A)
    A('s_sub_u32 s39, s34, 4')
    A('s_mul_i32 s39, s39, 5')
    A('s_mov_b32 s46, 5')
    A('s_mov_b32 s47, 5')
    A(f's_mul_i32 s42, s33, {20 * 4096}')
    if ROT:
        A('s_mul_i32 s43, s66, 5'); A('s_lshr_b32 s43, s43, 3')
        A('s_add_u32 s39, s39, s43')
        A('s_mov_b32 s48, 20')
        A(f's_add_u32 s36, s42, {OFF_AP}')
        A('s_mul_i32 s37, s32, 102400')
        A(f's_add_u32 s37, s37, {OFF_WP}')
    else:
        A('s_lshl_b32 s36, s39, 12')
        A('s_add_u32 s36, s36, s42')
        A(f's_add_u32 s36, s36, {OFF_AP}')
        A('s_mul_i32 s37, s32, 102400')
        A('s_mul_i32 s43, s39, 5120')
        A('s_add_u32 s37, s37, s43')
        A(f's_add_u32 s37, s37, {OFF_WP}')
    def stream(lab, sc, R):
        A(f's_sub_u32 s47, s47, {R}')
        for i in range(80):
            A(f'v_mov_b32 v{ACC + i}, 0')
        A.flush(4)
        A.label(f'{name}_{lab}')
        for b in range(R):
            A(f's_waitcnt vmcnt({9 * (R - 1)})')
            pre = nxt()
            for nt in range(5):
                for rt in range(4):
                    if 'nomfma' not in FL:
                        A(mf(b, nt, rt))
                    for _ in range(2):
                        if pre:
                            A(pre.pop(0))
                A(ldB(b, nt, sc))
            for rt in range(4):
                A(ldA(b, rt, sc))
            A('s_sub_u32 s47, s47, 1')
            A('s_cmp_eq_u32 s47, 0')
            if b < R - 1:
                A(f's_cbranch_scc1 {name}_{lab}_t{b + 1}')
            else:
                A(f's_cbranch_scc0 {name}_{lab}')
        for b0 in range(R):
            A.label(f'{name}_{lab}_t{b0}')
            for j in range(R):
                A(f's_waitcnt vmcnt({9 * (R - 1 - j)})')
                for nt in range(5):
                    for rt in range(4):
                        if 'nomfma' not in FL:
                            A(mf((b0 + j) % R, nt, rt))
            A(f's_branch {name}_ydone')
    A(f's_setprio {SPRIO}')
    for b in range(RS):
        issue(b, SC)
    stream('slp', SC, RS)
    A.label(f'{name}_ygo')
    for b in range(PRE):
        issue(b, YSC)
    A('s_barrier')
    for b in range(PRE, RY):
        issue(b, YSC)
    misc_setup()
    xloads()
    ST(A, 1); ST(A); ST(A); ST(A)
    stream('ylp', YSC, RY)
    A.label(f'{name}_ydone')
    ST(A)
    A(f'v_add_u32 v{V_T}, s35, v{V_B}')
    A('s_lshr_b32 s44, s34, 1')
    A('s_mul_i32 s44, s44, 5120')
    A('s_mul_i32 s45, s38, 3072')
    A('s_add_u32 s44, s44, s45')
    A(f'v_add_u32 v{V_T + 1}, s44, v{V_B}')
    for i in range(1, 3):
        A(f'v_add_u32 v{V_T + 1 + i}, {3 * REG * i}, v{V_T + 1}')
    A(f's_mov_b32 s44, {NLOG2E}')
    A.flush(4)
    for j in range(20):
        A(f'ds_write_b128 v{V_T}, v[{ACC + 4 * j}:{ACC + 4 * j + 3}] offset:{j * 1024}')
    A('s_waitcnt vmcnt(0) lgkmcnt(0)')
    A('s_barrier')
    ST(A)

    def tree(l):
        while len(l) > 1:
            n = []
            for k in range(0, len(l) - 1, 2):
                for i in range(4):
                    A(f'v_add_f32 v{l[k] + i}, v{l[k] + i}, v{l[k + 1] + i}')
                n.append(l[k])
            if len(l) & 1:
                n.append(l[-1])
            l = n
        return l[0]

    def pr(t, w):
        i = 8 * t + w
        return 32 + 4 * i if i < 16 else ACC + 4 * (i - 16)

    def reads(t):
        for w in range(8):
            r = pr(t, w)
            A(f'ds_read_b128 v[{r}:{r + 3}], v{V_T + 1 + w // 3} offset:{(w % 3) * REG + t * 1024}')

    def fin(t):
        y = tree([pr(t, w) for w in range(4)])
        T1 = pr(t, 1)
        for i in range(4):
            A(f'v_mul_f32 v{T1 + i}, s44, v{y + i}')
        for i in range(4):
            A(f'v_exp_f32 v{T1 + i}, v{T1 + i}')
        s = tree([pr(t, w) for w in range(4, 8)])
        for i in range(4):
            A(f'v_add_f32 v{T1 + i}, 1.0, v{T1 + i}')
        for i in range(4):
            A(f'v_rcp_f32 v{T1 + i}, v{T1 + i}')
        xr = XR + 2 * t
        xs = pr(t, 2)
        A(f'v_lshlrev_b32 v{xs}, 16, v{xr}')
        A(f'v_and_b32 v{xs + 1}, s64, v{xr}')
        A(f'v_lshlrev_b32 v{xs + 2}, 16, v{xr + 1}')
        A(f'v_and_b32 v{xs + 3}, s64, v{xr + 1}')
        for i in range(4):
            A(f'v_mul_f32 v{y + i}, v{T1 + i}, v{y + i}')
        for i in range(4):
            A(f'v_fma_f32 v{xs + i}, v{s + i}, v{y + i}, v{xs + i}')
        A(f'v_cvt_pk_bf16_f32 v{xr}, v{xs}, v{xs + 1}')
        A(f'v_cvt_pk_bf16_f32 v{xr + 1}, v{xs + 2}, v{xs + 3}')
        A(f'buffer_store_dwordx2 v[{xr}:{xr + 1}], v{V_X}, s[24:27], 0 offen offset:{t * 32}')
    reads(0)
    reads(1)
    A('s_cmp_lg_u32 s38, 0')
    A(f's_cbranch_scc1 {name}_ex2')
    reads(2)
    A('s_waitcnt lgkmcnt(8)')
    fin(0)
    fin(1)
    A('s_waitcnt lgkmcnt(0)')
    fin(2)
    sv = ST.n
    ST.dump(A)
    ST.n = sv
    A('s_endpgm')
    A.label(f'{name}_ex2')
    A('s_waitcnt lgkmcnt(8)')
    fin(0)
    A('s_waitcnt lgkmcnt(0)')
    fin(1)
    ST.dump(A)
    A.label(f'{name}_end')
    A('s_endpgm')
```

```python
import sys
from asmlib import Asm
from layout import *
import k1r as k1
import k2s as k2

NAME = "recurrent_scan__linear_attn_block__glu_gated_glu__prompt"
hdr = open(f"cdna_kernels/{NAME}.s.ref").read().split("; Override launch geometry")[0]

def kd(name, vgpr, accum, sgpr=102):
    return f""".p2align 6
.amdhsa_kernel {name}
  .amdhsa_next_free_vgpr {vgpr}
  .amdhsa_next_free_sgpr {sgpr}
  .amdhsa_accum_offset {accum}
  .amdhsa_group_segment_fixed_size 0
  .amdhsa_kernarg_size 80
  .amdhsa_user_sgpr_count 2
  .amdhsa_user_sgpr_kernarg_segment_ptr 1
  .amdhsa_system_sgpr_workgroup_id_x 1
.end_amdhsa_kernel
"""

A = Asm()
k1.gen_k1(A, "k1_kernel")
A3 = Asm()
k2.gen_k2(A3, "k2_kernel")
out = hdr
out += f"; @launch kernel=k1_kernel grid=(256,1,1) block=({k1.K1_BLOCK},1,1) lds={k1.K1_LDS}\n"
out += f"; @launch kernel=k2_kernel grid=(256,1,1) block=({k2.K2_BLOCK},1,1) lds={k2.K2_LDS}\n"
out += '.amdgcn_target "amdgcn-amd-amdhsa--gfx950"\n.text\n'
out += A.text() + A3.text()
out += '.section .rodata,"a"\n'
out += kd("k1_kernel", k1.K1_VGPR + k1.K1_AGPR, k1.K1_VGPR)
out += kd("k2_kernel", k2.K2_VGPR + k2.K2_AGPR, k2.K2_VGPR)
dst = sys.argv[1]
open(dst, "w").write(out)
print("nops:", A.nops, A3.nops, "bytes", len(out))
```
